```python
import torch

def _softmax(x, axis=-1):
    return torch.softmax(x, dim=axis)
def _gelu(x):
    return torch.nn.functional.gelu(x, approximate="tanh")
def _silu(x):
    return torch.nn.functional.silu(x)
def _sigmoid(x):
    return torch.sigmoid(x)
def _layernorm(x, axis=-1, eps=1e-5):
    m = x.mean(dim=axis, keepdim=True)
    v = x.var(dim=axis, keepdim=True, unbiased=False)
    return (x - m) / torch.sqrt(v + eps)
def _scatter_add(tgt, idx, src, axis=0):
    return tgt.clone().index_add_(axis, idx, src)
def _segment_sum(src, seg, n):
    out = torch.zeros((n,) + src.shape[1:], dtype=src.dtype)
    return out.index_add_(0, seg, src)
def _pad(x, pw):
    flat = tuple(v for pair in reversed(pw) for v in pair)
    return torch.nn.functional.pad(x, flat)

kernel_name = 'recurrent_scan__mha_block_cached__moe_arch_mod__prompt'

def setup_inputs():

    _w = (lambda a: (lambda t: t.to(torch.bfloat16) if t.is_floating_point() else t)(torch.as_tensor(a)))
    def _A_setup():
        B, Sq, D = 1, 2048, 640
        H, Sk, Dh = 32, 2048, 128
        return {
            "x": _w((lambda *s: torch.randn(*s, dtype=torch.bfloat16) * 0.05)(B, Sq, D)),
            "k_cache": _w((lambda *s: torch.randn(*s, dtype=torch.bfloat16) * 1.6)(B, H, Sk, Dh)),
            "v_cache": _w((lambda *s: torch.randn(*s, dtype=torch.bfloat16) * 0.2)(B, H, Sk, Dh)),
            "wq": _w((lambda *s: torch.randn(*s, dtype=torch.bfloat16) * 1.6)(D, H * Dh) * (D ** -0.5)),
            "wo": _w((lambda *s: torch.randn(*s, dtype=torch.bfloat16) * 0.2)(H * Dh, D) * ((H * Dh) ** -0.5)),
        }
    _A_in = _A_setup()

    def _B_setup():
        B, S, D, F, C = 1, 2048, 640, 1728, 1
        return {
            "x": _w((lambda *s: torch.randn(*s, dtype=torch.bfloat16) * 0.05)(B, S, D)),
            "w_r": _w((lambda *s: torch.randn(*s, dtype=torch.bfloat16) * 0.2)(D)),
            "w_gate": _w((lambda *s: torch.randn(*s, dtype=torch.bfloat16) * 0.1)(D, F)),
            "w_up": _w((lambda *s: torch.randn(*s, dtype=torch.bfloat16) * 0.1)(D, F)),
            "w_down": _w((lambda *s: torch.randn(*s, dtype=torch.bfloat16) * 0.1)(F, D)),
        }
    _B_in = _B_setup()

    return {
        "A_x": _A_in["x"],
        "A_k_cache": _A_in["k_cache"],
        "A_v_cache": _A_in["v_cache"],
        "A_wq": _A_in["wq"],
        "A_wo": _A_in["wo"],
        "B_x": _B_in["x"],
        "B_w_r": _B_in["w_r"],
        "B_w_gate": _B_in["w_gate"],
        "B_w_up": _B_in["w_up"],
        "B_w_down": _B_in["w_down"],
    }

def reference(A_x, A_k_cache, A_v_cache, A_wq, A_wo, B_x, B_w_r, B_w_gate, B_w_up, B_w_down):
    def _A_ref(x, k_cache, v_cache, wq, wo):
        B, Sq, D = x.shape
        H, Dh = 32, 128
        q = (lambda x, *d: x.permute(*d))((x @ wq).reshape(B, Sq, H, Dh), 0, 2, 1, 3)
        scores = torch.einsum("bhqd,bhkd->bhqk", q, k_cache) * (Dh ** -0.5)
        p = _softmax(scores, axis=-1)
        o = torch.einsum("bhqk,bhkd->bhqd", p, v_cache)
        return (lambda x, *d: x.permute(*d))(o, 0, 2, 1, 3).reshape(B, Sq, H * Dh) @ wo

    def _B_ref(x, w_r, w_gate, w_up, w_down):
        B, S, D = x.shape
        C = 1
        r = x @ w_r
        idx = torch.argsort(-r, axis=-1)[:, :C]
        idx_e = (lambda x, n, axis: torch.repeat_interleave(x, n, dim=axis))(idx.reshape(B, C, 1), D, axis=2)
        x_sel = (lambda x, i, axis: torch.take_along_dim(x, i, dim=axis))(x, idx_e, axis=1)
        g = _silu(x_sel @ w_gate)
        u = x_sel @ w_up
        y = (g * u) @ w_down
        r_sel = _sigmoid((lambda x, i, axis: torch.take_along_dim(x, i, dim=axis))(r, idx, axis=1))
        y = y * r_sel.reshape(B, C, 1)
        b_off = (torch.arange(B) * S).reshape(B, 1)
        flat_idx = (idx + b_off).reshape(B * C)
        zero = (x * 0.0).reshape(B * S, D)
        upd = _scatter_add(zero, flat_idx, y.reshape(B * C, D), axis=0)
        return x + upd.reshape(B, S, D)

    x = A_x
    xn = _layernorm(x, axis=-1)
    s = _A_ref(xn, A_k_cache, A_v_cache, A_wq, A_wo)
    g = _silu(_B_ref(xn, B_w_r, B_w_gate, B_w_up, B_w_down))
    return x + s * g
```

```python
class Asm:
    def __init__(self):
        self.lines = []
        self.ds = []
        self.vm = []
        self.max_vm = 0

    def e(self, s):
        self.lines.append("    " + s)

    def label(self, s):
        self.lines.append(s + ":")

    def comment(self, s):
        self.lines.append("    ; " + s)

    def raw(self, s):
        self.lines.append(s)

    def dsop(self, s, tag):
        self.e(s)
        self.ds.append(tag)

    def vmop(self, s, tag):
        self.e(s)
        self.vm.append(tag)
        self.max_vm = max(self.max_vm, len(self.vm))
        assert len(self.vm) <= 63, "more than 63 vector-memory ops in flight"

    @staticmethod
    def _cut(q, tags):
        idx = -1
        for i, t in enumerate(q):
            if t in tags:
                idx = i
        return idx

    def need(self, ds=(), vm=()):
        parts = []
        i = self._cut(self.vm, set(vm))
        if i >= 0:
            parts.append("vmcnt(%d)" % (len(self.vm) - 1 - i))
            self.vm = self.vm[i + 1:]
        i = self._cut(self.ds, set(ds))
        if i >= 0:
            n = len(self.ds) - 1 - i
            if n > 15:
                n = 15
                i = len(self.ds) - 1 - n
            parts.append("lgkmcnt(%d)" % n)
            self.ds = self.ds[i + 1:]
        if parts:
            self.e("s_waitcnt " + " ".join(parts))
        return bool(parts)

    def drain(self, ds=True, vm=True):
        parts = []
        if vm:
            parts.append("vmcnt(0)")
            self.vm = []
        if ds:
            parts.append("lgkmcnt(0)")
            self.ds = []
        self.e("s_waitcnt " + " ".join(parts))

    def item(self, it):
        k = it[0]
        if k == "ds":
            self.dsop(it[1], it[2])
        elif k == "vm":
            self.vmop(it[1], it[2])
        elif k == "need":
            self.need(ds=it[1], vm=it[2])
        elif k == "label":
            self.label(it[1])
        else:
            self.e(it[1])

    def items(self, its):
        for it in its:
            self.item(it)

    def text(self):
        return "\n".join(self.lines) + "\n"


COST = {"v": 4, "t": 8, "s": 4, "ds": 4, "vm": 8, "need": 4, "label": 0}


def weave(A, mfmas, pre=None, pin=None, post=None, fill=None, f0=0, f1=None):
    pre = pre or {}
    pin = pin or {}
    post = post or {}
    fill = list(fill or [])
    n = len(mfmas)
    if f1 is None:
        f1 = n

    def fixed(i):
        c = sum(COST[x[0]] for x in pin.get(i, [])) + sum(COST[x[0]] for x in post.get(i, []))
        c += sum(COST[x[0]] for x in pre.get(i + 1, []))
        return c

    total = sum(COST[x[0]] for x in fill) + sum(fixed(i) for i in range(f0, f1))
    per = total / max(1, f1 - f0)
    cum = 0.0
    fi = 0
    for i in range(n):
        A.items(pre.get(i, []))
        A.e(mfmas[i])
        A.items(pin.get(i, []))
        if f0 <= i < f1:
            cum += fixed(i)
            target = per * (i - f0 + 1)
            while fi < len(fill) and (i == f1 - 1 or cum + COST[fill[fi][0]] / 2.0 <= target):
                A.item(fill[fi])
                cum += COST[fill[fi][0]]
                fi += 1
        A.items(post.get(i, []))
    assert fi == len(fill)


def addto(d, k, *items):
    d.setdefault(k, []).extend(items)
```

```python
import math
import struct
from asmlib import Asm, weave, addto

WS_O = 0
WS_WOT = 16 << 20
WS_STATS = 24 << 20
WS_KEYS = WS_STATS + 0x10000
WS_YV = WS_STATS + 0x20000
WS_IDX = WS_YV + 0x1000
WS_YP = 25 << 20
WS_TS = 26 << 20
WS_SRD = 32 << 20

KSLOT = lambda i: i * 16384
VSLOT = lambda i: 65536 + i * 16384
SPARE0, SPARE1 = 131072, 147456
TAB1 = SPARE1 + 10240
TAB0 = TAB1 + 4096
CBUF = 163840 - 512
WQRING = [KSLOT(2), VSLOT(2), VSLOT(3), VSLOT(0), SPARE0]
LDS_BYTES = 163840
F_GU = SPARE0
F_XROW = F_GU + 20480
F_PART = F_XROW + 1280
F_WD = LDS_BYTES - 10240
NFF = 216


def fbits(x):
    return "0x%08x" % struct.unpack("<I", struct.pack("<f", x))[0]


QSCALE = math.log2(math.e) / math.sqrt(128.0)
BIG = 2.0 ** 60

sX, sK, sV, sWQ, sWO, sWR, sWS, sDBG = ("s[%d:%d]" % (b, b + 3) for b in (8, 12, 16, 20, 24, 28, 32, 36))
sW, sH, sQB, sKO, sVO, sXO, sWQO, sCNT, sW4K, sOO, sT0, sT1, sWOM, sWOS, sWOD = ("s%d" % i for i in range(40, 55))
sROW0, sSTB, sCB = "s55", "s92", "s93"
sCG, sIDX, sKEY, sKS = "s3", "s100", "s101", "s83"
sGU, sDN = sWQ, sWR
vPOLL, vSTAT, vKEY = 243, 244, 188
sRET = "s[56:57]"
sTS = 58

S = lambda par, qt, kt, r=0: par * 64 + qt * 16 + kt * 4 + r
P = lambda par, qt, ks, j=0: 128 + par * 32 + qt * 8 + ks * 4 + j
NEGM = lambda qt, r=0: 192 + 4 * qt + r
L = lambda par, qt: 208 + 4 * par + qt
T = lambda i: 216 + (i % 8)
KA = lambda s: 224 + s
VA = lambda dt: 228 + dt
DK = lambda i: 236 + i
DV = lambda i: 240 + (i % 2)
vLANE = 242
O = lambda dt, qt, r=0: (dt * 4 + qt) * 4 + r
QF = lambda s, qt: 128 + (s * 4 + qt) * 4
KB = lambda kb, s: 192 + kb * 16 + s * 4
VB = lambda vb, dtl, ks, hf=0: 224 + vb * 16 + (dtl * 2 + ks) * 4 + hf * 2
ACC = lambda qt, a, r=0: qt * 32 + a * 4 + r
WA = lambda a, ks, hf=0: 128 + (a % 4) * 8 + ks * 4 + hf * 2
CACC = lambda a: 160 + 4 * a
ONES = 168
WB = lambda s: 172 + s
WW = lambda s: 176 + s
WD = lambda i: 180 + i
XV = lambda qt: 184 + qt
GRAM = lambda qt, r=0: 188 + 4 * qt + r
OX = lambda qt, r=0: 204 + 4 * qt + r
TABF = lambda ks: 220 + 4 * ks
vTAB, vSW = 228, 229
TQ = lambda i: 230 + i
SC = lambda qt: 243 + qt
NM = lambda qt: 247 + qt
TX = lambda i: 251 + i
XR = lambda c, ks, qt: (c % 4) * 32 + (ks * 4 + qt) * 4
CV = lambda a, r=0: 128 + 4 * a + r


def vr(b, n=4):
    return "v[%d:%d]" % (b, b + n - 1)


def ar(b, n=4):
    return "a[%d:%d]" % (b, b + n - 1)


def mfma(d, a, b, c):
    return "v_mfma_f32_16x16x32_bf16 %s, %s, %s, %s" % (d, a, b, c)


V = lambda s: ("v", s)
TR = lambda s: ("t", s)
SA = lambda s: ("s", s)


def bf16r(dst, src):
    return [V("v_cvt_pk_bf16_f32 v%d, v%d, v%d" % (dst, src, src)), V("v_lshlrev_b32 v%d, 16, v%d" % (dst, dst))]


def xlane(op, x, tmp):
    out = []
    for sw in ("v_permlane32_swap_b32", "v_permlane16_swap_b32"):
        out += [V("v_mov_b32 v%d, v%d" % (tmp, x)), SA("s_nop 1"), V("%s v%d, v%d" % (sw, x, tmp)),
                V("%s v%d, v%d, v%d" % (op, x, x, tmp))]
    return out


class Gen:
    def __init__(self, name, stamps=False):
        self.A = Asm()
        self.name = name
        self.stamps = stamps
        self.nstamp = 0
        self.tail = []

    def stamp(self):
        if not self.stamps:
            return
        A = self.A
        r = sTS + 2 * self.nstamp
        assert r + 1 <= 81
        A.e("s_memtime s[%d:%d]" % (r, r + 1))
        A.e("s_waitcnt lgkmcnt(0)")
        self.nstamp += 1

    def stamp_store(self):
        if not self.stamps:
            return
        A = self.A
        A.e("s_memrealtime s[96:97]")
        A.drain()
        A.e("s_lshl_b32 %s, s2, 2" % sT0)
        A.e("s_add_u32 %s, %s, %s" % (sT0, sT0, sW))
        A.e("s_lshl_b32 %s, %s, 7" % (sT0, sT0))
        A.e("s_add_u32 %s, %s, %d" % (sT0, sT0, WS_TS))
        A.e("v_mov_b32 v1, 0")
        for i in range(self.nstamp):
            A.e("v_mov_b32 v0, s%d" % (sTS + 2 * i))
            A.e("buffer_store_dword v0, v1, %s, %s offen offset:%d" % (sWS, sT0, 4 * i))
        A.e("v_mov_b32 v0, s98")
        A.e("buffer_store_dword v0, v1, %s, %s offen offset:%d" % (sWS, sT0, 120))
        A.e("v_mov_b32 v0, s96")
        A.e("buffer_store_dword v0, v1, %s, %s offen offset:%d" % (sWS, sT0, 124))

    def entry(self):
        A = self.A
        A.raw(".globl %s" % self.name)
        A.raw(".p2align 8")
        A.raw(".type %s,@function" % self.name)
        A.label(self.name)
        A.e("s_cmp_ge_u32 s2, 256")
        A.e("s_cbranch_scc1 L_att_end")
        A.e("s_load_dwordx8 s[64:71], s[0:1], 0")
        A.e("s_load_dwordx2 s[72:73], s[0:1], 32")
        A.e("s_load_dwordx2 s[74:75], s[0:1], 48")
        A.e("s_load_dwordx4 s[76:79], s[0:1], 88")
        A.e("s_load_dwordx4 s[4:7], s[0:1], 56")
        A.e("s_load_dwordx2 s[94:95], s[0:1], 72")
        if self.stamps:
            A.e("s_memrealtime s[98:99]")
        A.e("v_lshrrev_b32 v1, 6, v0")
        A.e("v_and_b32 v%d, 63, v0" % vLANE)
        A.e("v_readfirstlane_b32 %s, v1" % sW)
        A.e("s_and_b32 %s, s2, 7" % sT0)
        A.e("s_lshr_b32 %s, s2, 3" % sT1)
        A.e("s_and_b32 %s, %s, 7" % (sQB, sT1))
        A.e("s_lshr_b32 %s, %s, 3" % (sT1, sT1))
        A.e("s_lshl_b32 %s, %s, 2" % (sT0, sT0))
        A.e("s_add_u32 %s, %s, %s" % (sH, sT0, sT1))
        A.e("s_lshl_b32 %s, %s, 12" % (sW4K, sW))
        A.e("v_and_b32 v1, 15, v0")
        A.e("v_bfe_u32 v2, v0, 4, 2")
        A.e("v_bfe_u32 v3, v0, 2, 2")
        A.e("v_and_b32 v4, 3, v0")
        A.e("v_mul_u32_u24 v5, 1280, v1")
        A.e("v_lshl_add_u32 v%d, v2, 4, v5" % XV(0))
        for qt in range(1, 4):
            A.e("v_add_u32 v%d, %d, v%d" % (XV(qt), 20480 * qt, XV(0)))
        A.e("s_lshl_b32 %s, %s, 2" % (sT0, sQB))
        A.e("s_add_u32 %s, %s, %s" % (sT0, sT0, sW))
        A.e("s_mul_i32 %s, %s, %d" % (sXO, sT0, 64 * 1280))
        A.e("s_lshl_b32 %s, %s, 6" % (sROW0, sT0))
        A.e("s_mov_b32 %s, %d" % (sSTB, WS_SRD))
        A.e("s_cmp_eq_u32 %s, 0" % sH)
        A.e("s_cmov_b32 %s, %d" % (sSTB, WS_STATS))
        A.e("s_lshl_b32 %s, %s, 2" % (sKS, sT0))
        A.e("s_cmp_lg_u32 %s, 0" % sH)
        A.e("s_cmov_b32 %s, 4096" % sKS)
        A.e("s_and_b32 %s, s2, 7" % sCG)
        A.e("s_mul_i32 %s, %s, 27" % (sCG, sCG))
        A.e("s_lshr_b32 %s, s2, 3" % sT1)
        A.e("s_add_u32 %s, %s, %s" % (sCG, sCG, sT1))
        A.e("s_lshl_b32 %s, %s, 7" % (sCB, sW))
        A.e("s_add_u32 %s, %s, %d" % (sCB, sCB, CBUF))
        A.e("s_lshl_b32 %s, %s, 7" % (sT0, sT0))
        A.e("s_lshl_b32 %s, %s, 2" % (sT1, sH))
        A.e("s_add_u32 %s, %s, %s" % (sT0, sT0, sT1))
        A.e("s_lshl_b32 %s, %s, 12" % (sOO, sT0))
        A.e("v_lshlrev_b32 v5, 2, v2")
        A.e("v_xor_b32 v5, v5, v1")
        A.e("v_lshlrev_b32 v5, 4, v5")
        A.e("v_lshl_add_u32 v%d, v2, 13, v5" % WD(0))
        for i in range(1, 4):
            A.e("v_add_u32 v%d, %d, v%d" % (WD(i), (32768 - 1024) * i, WD(0)))
        A.e("s_lshl_b32 %s, %s, 8" % (sWQO, sH))
        A.e("s_lshl_b32 %s, %s, 17" % (sT0, sW))
        A.e("s_add_u32 %s, %s, %s" % (sWQO, sWQO, sT0))
        A.e("v_lshlrev_b32 v6, 4, v0")
        A.e("s_waitcnt lgkmcnt(0)")
        for srd, lo, size in ((8, 64, 2621440), (12, 66, 16777216), (16, 68, 16777216), (20, 70, 5242880),
                              (24, 72, 5242880), (28, 74, 1280), (32, 78, WS_SRD), (36, 76, 256)):
            A.e("s_mov_b32 s%d, s%d" % (srd, lo))
            A.e("s_mov_b32 s%d, s%d" % (srd + 1, lo + 1))
            A.e("s_mov_b32 s%d, %d" % (srd + 2, size))
            A.e("s_mov_b32 s%d, 0x00020000" % (srd + 3))
        self.stamp()
        A.e("s_lshl_b32 %s, %s, 10" % (sT0, sW))
        A.e("s_add_u32 m0, %s, %d" % (sT0, TAB1))
        A.e("s_nop 0")
        A.vmop("buffer_load_dwordx4 v6, %s, 0 offen lds" % sWR, "tab")
        for c in range(3):
            A.items(self.wq_dma(c))
            A.items(self.x_loads(c))
        A.e("v_lshl_add_u32 v5, v2, 3, v3")
        A.e("v_lshlrev_b32 v5, 8, v5")
        A.e("v_lshlrev_b32 v6, 2, v3")
        for s in range(4):
            A.e("s_add_u32 %s, %s, %d" % (sT0, sW, s))
            A.e("s_and_b32 %s, %s, 3" % (sT0, sT0))
            A.e("s_lshl_b32 %s, %s, 2" % (sT0, sT0))
            A.e("v_or_b32 v7, %s, v4" % sT0)
            A.e("v_xor_b32 v7, v7, v6")
            A.e("v_lshl_add_u32 v%d, v7, 4, v5" % WB(s))
        A.e("v_lshlrev_b32 v5, 8, v2")
        A.e("v_add_u32 v5, %s, v5" % sW4K)
        A.e("v_xor_b32 v6, v1, v2")
        A.e("v_lshl_add_u32 v%d, v6, 4, v5" % DK(0))
        for i in range(1, 4):
            A.e("v_xor_b32 v%d, %d, v%d" % (DK(i), 64 * i, DK(0)))
        A.e("v_lshlrev_b32 v6, 1, v2")
        A.e("v_xor_b32 v6, v6, v1")
        A.e("v_lshl_add_u32 v%d, v6, 4, v5" % DV(0))
        A.e("v_xor_b32 v%d, 128, v%d" % (DV(1), DV(0)))
        A.e("s_lshl_b32 %s, %s, 19" % (sKO, sH))
        A.e("s_mov_b32 %s, %s" % (sVO, sKO))
        for j in range(4):
            A.e("v_mov_b32 v%d, 0x3f803f80" % (ONES + j))
        A.e("v_min_u32 v5, 159, v0")
        A.e("v_lshlrev_b32 v5, 3, v5")
        A.e("v_add_u32 v5, %d, v5" % TAB0)
        A.dsop("ds_write_b64 v5, %s" % vr(ONES, 2), "tabw")
        A.e("v_mov_b32 v5, %d" % TAB0)
        A.e("v_mov_b32 v6, %d" % TAB1)
        A.e("v_cmp_eq_u32 vcc, 1, v4")
        A.e("s_nop 1")
        A.e("v_cndmask_b32 v5, v5, v6, vcc")
        A.e("v_lshl_add_u32 v%d, v2, 4, v5" % vTAB)
        A.e("s_mul_i32 %s, %s, 5120" % (sT0, sW))
        A.e("s_mov_b32 %s, %d" % (sT1, SPARE1 - 10240))
        A.e("s_cmp_lt_u32 %s, 2" % sW)
        A.e("s_cmov_b32 %s, %d" % (sT1, KSLOT(2)))
        A.e("s_add_u32 %s, %s, %s" % (sWOM, sT0, sT1))
        A.e("s_and_b32 %s, s2, 1" % sT0)
        A.e("s_lshl_b32 %s, %s, 2" % (sT0, sT0))
        A.e("s_add_u32 %s, %s, %s" % (sT0, sT0, sW))
        A.e("s_lshr_b32 %s, s2, 1" % sT1)
        A.e("s_mul_i32 %s, %s, 160" % (sWOS, sT0))
        A.e("s_mul_i32 %s, %s, %d" % (sWOD, sT1, 32 * 1280))
        A.e("s_add_u32 %s, %s, %s" % (sWOS, sWOS, sWOD))
        A.e("s_lshl_b32 %s, %s, 7" % (sT0, sT0))
        A.e("s_add_u32 %s, %s, %s" % (sT0, sT0, sT1))
        A.e("s_mul_i32 %s, %s, 5120" % (sWOD, sT0))
        A.e("s_add_u32 %s, %s, %d" % (sWOD, sWOD, WS_WOT))

    def wq_dma(self, c):
        out = [SA("s_add_u32 m0, %s, %d" % (sW4K, WQRING[c % 5])), SA("s_nop 0")]
        for i in range(4):
            out.append(("vm", "buffer_load_dwordx4 v%d, %s, %s offen offset:%d lds" % (WD(i), sWQ, sWQO, 1024 * i), "wq%d" % c))
        out.append(SA("s_add_u32 %s, %s, %d" % (sWQO, sWQO, 64 * 8192)))
        return out

    def x_loads(self, c):
        return [("vm", "buffer_load_dwordx4 %s, v%d, %s, %s offen offset:%d" % (ar(XR(c, ks, qt)), XV(qt), sX, sXO, 128 * c + 64 * ks), "x%d" % c)
                for qt in range(4) for ks in range(2)]

    def kv_dma(self, which, slot, tag):
        srd, off, base, vo = (sK, sKO, KSLOT(slot), DK) if which == "K" else (sV, sVO, VSLOT(slot), DV)
        m0 = SA("s_add_u32 m0, %s, %d" % (sW4K, base))
        lds = [("vm", "buffer_load_dwordx4 v%d, %s, %s offen offset:%d lds" % (vo(i), srd, off, 1024 * i), tag) for i in range(4)]
        adv = SA("s_add_u32 %s, %s, 16384" % (off, off))
        return m0, lds, adv

    def wa_reads(self, a):
        return [("ds", "ds_read_b64_tr_b16 %s, v%d offset:%d" % (vr(WA(a, ks, hf), 2), WW((a % 8) // 2), 8192 * ks + 1024 * hf + 8 * (a % 2)), "wa%d" % (a % 4))
                for ks in range(2) for hf in range(2)]

    def tab_reads(self, c):
        return [("ds", "ds_read_b128 %s, v%d offset:%d" % (vr(TABF(ks)), vTAB, 128 * c + 64 * ks), "tf") for ks in range(2)]

    def ww_set(self, c, s):
        return V("v_add_u32 v%d, %d, v%d" % (WW(s), WQRING[c % 5], WB(s)))

    def sw_job(self):
        out = [V("v_lshlrev_b32 v%d, 2, v%d" % (TQ(5), vLANE)), V("v_add_u32 v%d, %d, v%d" % (TQ(5), TAB1, TQ(5))), SA("s_nop 0")]
        for i in range(5):
            out.append(("ds", "ds_read_b32 v%d, v%d offset:%d" % (TQ(i), TQ(5), 256 * i), "sw"))
            out.append(SA("s_nop 0"))
        out.append(("need", ["sw"], []))
        out.append(V("v_mov_b32 v%d, 0" % vSW))
        for i in range(5):
            out += [V("v_and_b32 v%d, 0xffff0000, v%d" % (TQ(5), TQ(i))), V("v_lshlrev_b32 v%d, 16, v%d" % (TQ(i), TQ(i))),
                    V("v_add_f32 v%d, v%d, v%d" % (vSW, vSW, TQ(5))), V("v_add_f32 v%d, v%d, v%d" % (vSW, vSW, TQ(i)))]
        for n in (8, 4, 2, 1):
            out += [SA("s_nop 1"), V("v_add_f32_dpp v%d, v%d, v%d row_ror:%d row_mask:0xf bank_mask:0xf" % (vSW, vSW, vSW, n))]
        out += xlane("v_add_f32", vSW, TQ(5))
        return out

    def stats_job(self):
        out = []
        a, b, c_, d, e, f = (TQ(i) for i in range(6))
        m1, m2, m3 = "s[84:85]", "s[86:87]", "s[88:89]"
        md = "s[90:91]"
        out += [V("v_and_b32 v%d, 3, v%d" % (a, vLANE)),
                V("v_cmp_eq_u32 %s, 1, v%d" % (m1, a)), V("v_cmp_eq_u32 %s, 2, v%d" % (m2, a)), V("v_cmp_eq_u32 %s, 3, v%d" % (m3, a)),
                V("v_bfe_u32 v%d, v%d, 2, 2" % (a, vLANE)), V("v_lshrrev_b32 v%d, 4, v%d" % (b, vLANE)),
                V("v_cmp_eq_u32 %s, v%d, v%d" % (md, a, b))]
        out += [V("v_and_b32 v%d, 15, v%d" % (TX(0), vLANE)), V("v_add_u32 v%d, %s, v%d" % (TX(0), sROW0, TX(0))),
                V("v_lshlrev_b32 v%d, 2, v%d" % (TX(1), TX(0))), V("v_add_u32 v%d, %s, v%d" % (TX(1), sSTB, TX(1))),
                V("v_sub_u32 v%d, 0xffff, v%d" % (TX(0), TX(0)))]
        for qt in range(4):
            out += [V("v_cndmask_b32 v%d, v%d, v%d, %s" % (a, GRAM(qt, 0), GRAM(qt, 1), m1)),
                    V("v_cndmask_b32 v%d, v%d, v%d, %s" % (a, a, GRAM(qt, 2), m2)),
                    V("v_cndmask_b32 v%d, v%d, v%d, %s" % (a, a, GRAM(qt, 3), m3)),
                    V("v_cndmask_b32 v%d, 0, v%d, %s" % (a, a, md))]
            out += xlane("v_add_f32", a, b)
            out += [V("v_mul_f32 v%d, %s, v%d" % (b, fbits(1.0 / 640), OX(qt, 0))),
                    V("v_mul_f32 v%d, %s, v%d" % (a, fbits(1.0 / 640), a)),
                    V("v_fma_f32 v%d, -v%d, v%d, v%d" % (a, b, b, a)),
                    V("v_max_f32 v%d, 0, v%d" % (a, a))]
            out += bf16r(b, b) + bf16r(a, a)
            out += [V("v_add_f32 v%d, %s, v%d" % (a, fbits(1e-5), a))] + bf16r(a, a)
            out += [TR("v_sqrt_f32 v%d, v%d" % (a, a)), V("v_sub_f32 v%d, 0, v%d" % (NM(qt), b))] + bf16r(a, a)
            out += [TR("v_rcp_f32 v%d, v%d" % (c_, a)),
                    V("v_fma_f32 v%d, v%d, v%d, v%d" % (d, NM(qt), vSW, OX(qt, 1))),
                    V("v_mul_f32 v%d, %s, v%d" % (SC(qt), fbits(QSCALE), c_)),
                    V("v_mul_f32 v%d, v%d, v%d" % (d, d, c_)),
                    V("v_lshrrev_b32 v%d, 16, v%d" % (b, b)),
                    V("v_or_b32 v%d, v%d, v%d" % (e, a, b)),
                    V("v_cvt_pk_bf16_f32 v%d, v%d, v%d" % (d, d, d)),
                    V("v_ashrrev_i32 v%d, 31, v%d" % (c_, d)),
                    V("v_or_b32 v%d, 0x80000000, v%d" % (c_, c_)),
                    V("v_xor_b32 v%d, v%d, v%d" % (d, d, c_)),
                    V("v_and_b32 v%d, 0xffff0000, v%d" % (d, d)),
                    V("v_subrev_u32 v%d, %d, v%d" % (c_, 16 * qt, TX(0))),
                    V("v_or_b32 v%d, v%d, v%d" % (f if qt else vKEY, d, c_))]
            if qt:
                out.append(V("v_max_u32 v%d, v%d, v%d" % (vKEY, vKEY, f)))
            out += [SA("s_nop 0"),
                    ("vm", "buffer_store_dword v%d, v%d, %s, 0 offen offset:%d sc1" % (e, TX(1), sWS, 64 * qt), "stat")]
        return out

    def kava(self):
        a, b, c_, d = TX(0), TX(1), TX(2), TX(3)
        out = [V("v_and_b32 v%d, 15, v%d" % (a, vLANE)), V("v_lshrrev_b32 v%d, 4, v%d" % (b, vLANE))]
        for s in range(4):
            out += [SA("s_add_u32 %s, %s, %d" % (sT0, sW, s)), SA("s_and_b32 %s, %s, 3" % (sT0, sT0)), SA("s_lshl_b32 %s, %s, 2" % (sT0, sT0)),
                    V("v_or_b32 v%d, %s, v%d" % (c_, sT0, b)), V("v_xor_b32 v%d, v%d, v%d" % (c_, c_, a)),
                    V("v_lshlrev_b32 v%d, 4, v%d" % (c_, c_)), V("v_lshl_add_u32 v%d, v%d, 8, v%d" % (KA(s), a, c_))]
        out += [V("v_lshrrev_b32 v%d, 2, v%d" % (a, vLANE)), V("v_and_b32 v%d, 7, v%d" % (b, a)), V("v_lshlrev_b32 v%d, 1, v%d" % (b, b)),
                V("v_bfe_u32 v%d, v%d, 1, 1" % (c_, vLANE)), V("v_xor_b32 v%d, v%d, v%d" % (b, b, c_)),
                V("v_lshlrev_b32 v%d, 4, v%d" % (b, b)), V("v_lshl_add_u32 v%d, v%d, 8, v%d" % (b, a, b)),
                V("v_and_b32 v%d, 1, v%d" % (c_, vLANE)), V("v_lshl_add_u32 v%d, v%d, 3, v%d" % (b, c_, b)),
                V("v_add_u32 v%d, 0x10000, v%d" % (VA(0), b))]
        for dt in range(1, 8):
            out.append(V("v_xor_b32 v%d, %d, v%d" % (VA(dt), 32 * dt, VA(0))))
        return out

    def wo_dma(self):
        out = []
        a, b = TX(3), TX(4)
        out.append(SA("s_mov_b32 m0, %s" % sWOM))
        for i in range(5):
            out += [V("v_add_u32 v%d, %d, v%d" % (a, 64 * i, vLANE)),
                    V("v_mul_u32_u24 v%d, 6554, v%d" % (b, a)), V("v_lshrrev_b32 v%d, 16, v%d" % (b, b)),
                    V("v_mul_u32_u24 v%d, %d, v%d" % (b, 1280 - 160, b)), V("v_lshl_add_u32 v%d, v%d, 4, v%d" % (a, vLANE, b)),
                    SA("s_nop 0")]
            if i < 4:
                out.append(("vm", "buffer_load_dwordx4 v%d, %s, %s offen offset:%d lds" % (a, sWO, sWOS, 1024 * i), "wo"))
            else:
                out += [SA("s_add_u32 m0, %s, 4096" % sWOM), V("v_add_u32 v%d, 4096, v%d" % (a, a)), SA("s_nop 0"),
                        ("vm", "buffer_load_dwordx4 v%d, %s, %s offen lds" % (a, sWO, sWOS), "wo")]
        return out

    def wo_tile(self):
        a, b = TX(3), TX(4)
        R = 160
        out = [V("v_lshrrev_b32 v%d, 2, v%d" % (a, vLANE)), V("v_mul_u32_u24 v%d, 160, v%d" % (a, a)),
               V("v_and_b32 v%d, 3, v%d" % (b, vLANE)), V("v_mul_u32_u24 v%d, 40, v%d" % (b, b)),
               V("v_add3_u32 v%d, v%d, v%d, %s" % (a, a, b, sWOM)), V("v_lshlrev_b32 v%d, 4, v%d" % (b, vLANE)),
               ("need", [], ["wo"])]
        for nt in range(5):
            for hf in range(2):
                out.append(("ds", "ds_read_b64_tr_b16 %s, v%d offset:%d" % (vr(R + 4 * nt + 2 * hf, 2), a, 2560 * hf + 8 * nt), "wot%d" % nt))
                out.append(SA("s_nop 0"))
        for nt in range(5):
            out.append(("need", ["wot%d" % nt], []))
            if nt == 4:
                out.append(SA("s_add_u32 %s, %s, 4096" % (sWOD, sWOD)))
            out.append(("vm", "buffer_store_dwordx4 %s, v%d, %s, %s offen offset:%d sc1" % (vr(R + 4 * nt), b, sWS, sWOD, 1024 * (nt % 4)), "wos"))
        return out

    def proj(self):
        A = self.A
        for s in range(4):
            A.item(self.ww_set(0, s))
        A.need(ds=["tabw"], vm=["tab", "wq0"])
        A.e("s_barrier")
        A.items(self.tab_reads(0) + self.wa_reads(0) + self.wa_reads(1))
        self.stamp()
        for c in range(10):
            mf, pre, pin, post, fill = [], {}, {}, {}, []
            first = (c == 0)
            addto(pre, 0, ("need", ["tf"], ["x%d" % c]))
            for qt in range(4):
                for ks in range(2):
                    x = ar(XR(c, ks, qt))
                    mf.append(mfma(vr(OX(qt)), vr(TABF(ks)), x, "0" if first and ks == 0 else vr(OX(qt))))
                for ks in range(2):
                    x = ar(XR(c, ks, qt))
                    mf.append(mfma(vr(GRAM(qt)), x, x, "0" if first and ks == 0 else vr(GRAM(qt))))
            starts = []
            for a in range(8):
                starts.append(len(mf))
                addto(pre, len(mf), ("need", ["wa%d" % (a % 4)], []))
                if a < 2:
                    for ks in range(2):
                        mf.append(mfma(vr(CACC(a)), vr(WA(a, ks)), vr(ONES), "0" if first and ks == 0 else vr(CACC(a))))
                for qt in range(4):
                    for n, ks in enumerate((0, 1) if qt % 2 == 0 else (1, 0)):
                        mf.append(mfma(vr(ACC(qt, a)), vr(WA(a, ks)), ar(XR(c, ks, qt)), "0" if first and n == 0 else vr(ACC(qt, a))))
            for a in range(8):
                nxt = a + 2
                if nxt >= 8 and c == 9:
                    continue
                g0 = starts[a]
                if nxt == 8:
                    addto(post, starts[5] + 4, self.ww_set(c + 1, 0))
                    addto(pre, g0, ("need", [], ["wq%d" % (c + 1)]))
                    addto(pin, g0, SA("s_barrier"))
                    g0 += 1
                for j, rd in enumerate(self.wa_reads(nxt)):
                    addto(pin, g0 + j, rd)
            if c < 9:
                for j, rd in enumerate(self.tab_reads(c + 1)):
                    addto(pin, starts[7] + 5 + j, rd)
                for s in (1, 2):
                    addto(post, starts[7] + s, self.ww_set(c + 1, s))
            if c > 0:
                addto(post, starts[1] + 2, self.ww_set(c, 3))
            gl = []
            if c + 3 < 10:
                w = self.wq_dma(c + 3)
                addto(post, 0, w[0])
                for j in range(4):
                    addto(pin, 2 + 2 * j, w[2 + j])
                addto(post, 9, w[6])
                gl = self.x_loads(c + 3)
            for j, ld in enumerate(gl):
                addto(pin, starts[j // 2 + 1] + 5 + 2 * (j % 2), ld)
            kv = {3: ("K", 3, "k0"), 4: ("K", 0, "st0"), 5: ("K", 1, "st1"), 6: ("V", 1, "st1")}.get(c)
            if kv:
                m0, lds, adv = self.kv_dma(*kv)
                addto(post, 10, m0)
                for j in range(4):
                    addto(pin, 12 + j, lds[j])
                addto(post, 15, adv)
            f0, f1 = 0, len(mf)
            if c == 1:
                fill = self.sw_job()
                f0 = 16
            if c == 7:
                fill = self.wo_dma()
                f0 = 16
            if c == 9:
                cw = [V("v_lshrrev_b32 v%d, 4, v%d" % (TX(4), vLANE)), V("v_lshlrev_b32 v%d, 4, v%d" % (TX(4), TX(4))),
                      V("v_add_u32 v%d, %s, v%d" % (TX(3), sCB, TX(4)))]
                for it in cw:
                    addto(post, starts[1] + 4, it)
                addto(pin, starts[3] + 5, ("ds", "ds_write_b128 v%d, %s" % (TX(3), vr(CACC(0))), "cw"))
                addto(pin, starts[3] + 7, ("ds", "ds_write_b128 v%d, %s offset:64" % (TX(3), vr(CACC(1))), "cw"))
                fill = self.stats_job()
                f0 = 20
            weave(A, mf, pre, pin, post, fill, f0, f1)
        self.stamp()

    def finalize_q(self):
        A = self.A
        A.need(ds=["cw"], vm=["k0"])
        A.e("s_barrier")
        for s in range(4):
            A.e("s_add_u32 %s, %s, %d" % (sT0, sW, s))
            A.e("s_and_b32 %s, %s, 3" % (sT0, sT0))
            A.e("s_lshl_b32 %s, %s, 7" % (sT0, sT0))
            A.e("s_add_u32 %s, %s, %d" % (sT0, sT0, CBUF))
            A.e("v_add_u32 v%d, %s, v%d" % (TQ(s), sT0, TX(4)))
        A.e("s_nop 0")
        for a in range(8):
            A.dsop("ds_read_b128 %s, v%d offset:%d" % (vr(CV(a)), TQ(a // 2), 64 * (a % 2)), "cv")
        A.need(ds=["cv"])
        A.items(self.kava())
        for kt in range(2):
            A.items(self.k_reads(3, kt, kt))
        for qt in range(4):
            for a in range(8):
                for r in range(4):
                    A.e("v_fma_f32 v%d, v%d, v%d, v%d" % (ACC(qt, a, r), NM(qt), CV(a, r), ACC(qt, a, r)))
                for r in range(4):
                    A.e("v_mul_f32 v%d, v%d, v%d" % (ACC(qt, a, r), SC(qt), ACC(qt, a, r)))
                for j in range(2):
                    A.e("v_cvt_pk_bf16_f32 v%d, v%d, v%d" % (ACC(qt, a, 2 * j), ACC(qt, a, 2 * j), ACC(qt, a, 2 * j + 1)))
                for j in range(2):
                    A.e("v_accvgpr_write_b32 a%d, v%d" % (QF(a // 2, qt) + 2 * (a % 2) + j, ACC(qt, a, 2 * j)))
        A.e("s_nop 1")
        self.stamp()

    def k_reads(self, slot, kt, kb):
        return [("ds", "ds_read_b128 %s, v%d offset:%d" % (ar(KB(kb, s)), KA(s), KSLOT(slot) + 4096 * kt), "kb%d" % kb) for s in range(4)]

    def v_reads(self, slot, blk, vb):
        return [("ds", "ds_read_b64_tr_b16 %s, v%d offset:%d" % (ar(VB(vb, dtl, ks, hf), 2), VA(2 * blk + dtl), 16384 * slot + 8192 * ks + 4096 * hf), "vb%d" % vb)
                for dtl in range(2) for ks in range(2) for hf in range(2)]

    def qk_block(self, par, kt, kb, zero=False):
        mf = []
        for qt in range(4):
            for n, s in enumerate((0, 1, 2, 3) if qt % 2 == 0 else (3, 2, 1, 0)):
                c = vr(S(par, qt, kt)) if n else ("0" if zero else vr(NEGM(qt)))
                mf.append(mfma(vr(S(par, qt, kt)), ar(KB(kb, s)), ar(QF(s, qt)), c))
        return mf

    def pv_block(self, par, blk, vb, zero=False):
        mf = []
        for dtl in range(2):
            dt = 2 * blk + dtl
            for qt in range(4):
                for n, ks in enumerate((0, 1) if qt % 2 == 0 else (1, 0)):
                    c = "0" if (zero and n == 0) else ar(O(dt, qt))
                    mf.append(mfma(ar(O(dt, qt)), ar(VB(vb, dtl, ks)), vr(P(par, qt, ks)), c))
        return mf

    def softmax(self, par, check=True):
        out, prev, k = [], None, 0
        seen = set()
        for ks in range(2):
            for qt in range(4):
                for b in range(2):
                    for r in (0, 2):
                        t0, t1 = T(2 * k), T(2 * k + 1)
                        k += 1
                        src = S(par, qt, 2 * ks + b, r)
                        e0 = TR("v_exp_f32 v%d, v%d" % (t0, src))
                        e1 = TR("v_exp_f32 v%d, v%d" % (t1, src + 1))
                        old = L(par, qt) if qt in seen else L(1 - par, qt)
                        seen.add(qt)
                        cur = [V("v_add_f32 v%d, v%d, v%d" % (L(par, qt), old, t0)),
                               V("v_add_f32 v%d, v%d, v%d" % (L(par, qt), L(par, qt), t1)),
                               V("v_cvt_pk_bf16_f32 v%d, v%d, v%d" % (P(par, qt, ks, 2 * b + r // 2), t0, t1))]
                        if prev:
                            out += [e0, prev[0], prev[1], e1, prev[2]]
                        else:
                            out += [e0, e1]
                        prev = cur
        out += [SA("s_nop 0")] + prev
        if check:
            out += [V("v_max3_f32 v%d, v%d, v%d, v%d" % (T(0), L(par, 0), L(par, 1), L(par, 2))),
                    V("v_max_f32 v%d, v%d, v%d" % (T(0), T(0), L(par, 3))),
                    V("v_cmp_ngt_f32 vcc, %s, v%d" % (fbits(BIG), T(0)))]
        return out

    def first_tile(self):
        A = self.A
        mf, pre, pin, post = [], {}, {}, {}
        for kt in range(4):
            g0 = len(mf)
            addto(pre, g0, ("need", ["kb%d" % (kt % 2)], []))
            mf += self.qk_block(0, kt, kt % 2, zero=True)
            if 1 <= kt <= 2:
                for j, rd in enumerate(self.k_reads(3, kt + 1, (kt + 1) % 2)):
                    addto(pin, g0 + j, rd)
            if kt == 3:
                addto(pre, g0, ("need", [], ["st0", "stat"]))
                addto(pin, g0, SA("s_barrier"))
                addto(pin, g0 + 6, ("vm", "buffer_store_dword v%d, off, %s, %s sc1" % (vKEY, sDBG, sKS), "key"))
                for j, rd in enumerate(self.k_reads(0, 0, 0)):
                    addto(pin, g0 + 1 + j, rd)
        keymax = []
        for n in (8, 4, 2, 1):
            keymax += [V("v_max_u32_dpp v%d, v%d, v%d row_ror:%d row_mask:0xf bank_mask:0xf" % (vKEY, vKEY, vKEY, n)), SA("s_nop 1")]
        weave(A, mf, pre, pin, post, keymax + self.wo_tile(), 0, 44)
        A.e("s_nop 7")
        for qt in range(4):
            m = T(qt)
            A.e("v_max3_f32 v%d, v%d, v%d, v%d" % (m, S(0, qt, 0, 0), S(0, qt, 0, 1), S(0, qt, 0, 2)))
            for j in range(3, 15, 2):
                A.e("v_max3_f32 v%d, v%d, v%d, v%d" % (m, m, S(0, qt, 0, j), S(0, qt, 0, j + 1)))
            A.e("v_max_f32 v%d, v%d, v%d" % (m, m, S(0, qt, 0, 15)))
        for sw in ("v_permlane32_swap_b32", "v_permlane16_swap_b32"):
            for qt in range(4):
                A.e("v_mov_b32 v%d, v%d" % (T(4 + qt), T(qt)))
            A.e("s_nop 0")
            for qt in range(4):
                A.e("%s v%d, v%d" % (sw, T(qt), T(4 + qt)))
            for qt in range(4):
                A.e("v_max_f32 v%d, v%d, v%d" % (T(qt), T(qt), T(4 + qt)))
        for qt in range(4):
            for r in range(4):
                A.e("v_sub_f32 v%d, 0, v%d" % (NEGM(qt, r), T(qt)))
            A.e("v_mov_b32 v%d, 0" % L(1, qt))
        for qt in range(4):
            for j in range(16):
                A.e("v_sub_f32 v%d, v%d, v%d" % (S(0, qt, 0, j), S(0, qt, 0, j), T(qt)))
        self.stamp()

    def iteration(self, t, qk=True, pv=True, dmak=True, dmav=True, zero=False, nextk=True, uid=None):
        A = self.A
        par, slot = t % 2, t % 4
        mf, pre, pin, post = [], {}, {}, {}
        blocks = []
        for b in range(4):
            if qk:
                blocks.append(("qk", b))
            if pv:
                blocks.append(("pv", b))
        start = {}
        for kind, b in blocks:
            start[(kind, b)] = len(mf)
            if kind == "qk":
                addto(pre, len(mf), ("need", ["kb%d" % (b % 2)], []))
                mf += self.qk_block(1 - par, b, b % 2)
            else:
                addto(pre, len(mf), ("need", ["vb%d" % (b % 2)], []))
                mf += self.pv_block(1 - par, b, b % 2, zero)
        last = start[blocks[-1]]
        for i, (kind, b) in enumerate(blocks):
            g0 = start[(kind, b)]
            if i + 1 < len(blocks):
                nk, nb = blocks[i + 1]
                rd = self.k_reads(slot, nb, nb % 2) if nk == "qk" else self.v_reads(slot, nb, nb % 2)
            else:
                pre[g0] = [("need", ["kb%d" % (b % 2)] if kind == "qk" else ["vb%d" % (b % 2)], ["st%d" % ((t + 1) % 4)])]
                addto(pin, g0, SA("s_barrier"))
                g0 += 1
                rd = self.k_reads((t + 1) % 4, 0, 0) if nextk else self.v_reads((t + 1) % 4, 0, 0)
            for j, r in enumerate(rd):
                addto(pin, g0 + j, r)
        g = 9
        for on, which in ((dmak, "K"), (dmav, "V")):
            if on:
                m0, lds, adv = self.kv_dma(which, (t + 2) % 4, "st%d" % ((t + 2) % 4))
                addto(post, g - 1, m0)
                for j in range(4):
                    addto(pin, g + 2 * j, lds[j])
                addto(post, g + 6, adv)
                g += 16
        check = t > 0
        weave(A, mf, pre, pin, post, self.softmax(par, check), 0, len(mf) - 1)
        if check:
            uid = uid if uid is not None else t
            A.e("s_cbranch_vccnz L_rare_%d" % uid)
            A.label("L_back_%d" % uid)
            self.tail += ["L_rare_%d:" % uid, "    s_call_b64 %s, L_rescale_%d" % (sRET, par), "    s_branch L_back_%d" % uid]

    def rescale(self, par):
        A = self.A
        A.label("L_rescale_%d" % par)
        A.e("s_nop 7")
        A.e("s_nop 7")
        d, f, u = T(0), T(1), T(2)
        for qt in range(4):
            A.e("v_max3_f32 v%d, v%d, v%d, v%d" % (d, S(par, qt, 0, 0), S(par, qt, 0, 1), S(par, qt, 0, 2)))
            for j in range(3, 15, 2):
                A.e("v_max3_f32 v%d, v%d, v%d, v%d" % (d, d, S(par, qt, 0, j), S(par, qt, 0, j + 1)))
            A.e("v_max3_f32 v%d, v%d, v%d, 0" % (d, d, S(par, qt, 0, 15)))
            A.items(xlane("v_max_f32", d, u))
            A.e("v_exp_f32_e64 v%d, -v%d" % (f, d))
            for j in range(16):
                A.e("v_sub_f32 v%d, v%d, v%d" % (S(par, qt, 0, j), S(par, qt, 0, j), d))
                A.e("v_sub_f32 v%d, v%d, v%d" % (S(1 - par, qt, 0, j), S(1 - par, qt, 0, j), d))
            for r in range(4):
                A.e("v_sub_f32 v%d, v%d, v%d" % (NEGM(qt, r), NEGM(qt, r), d))
            A.e("v_mul_f32 v%d, v%d, v%d" % (L(par, qt), L(1 - par, qt), f))
            for dt in range(8):
                for r in range(4):
                    A.e("v_accvgpr_read_b32 v%d, a%d" % (T(4 + r), O(dt, qt, r)))
                for r in range(4):
                    A.e("v_mul_f32 v%d, v%d, v%d" % (T(4 + r), T(4 + r), f))
                for r in range(4):
                    A.e("v_accvgpr_write_b32 a%d, v%d" % (O(dt, qt, r), T(4 + r)))
            for kt in range(4):
                for r in range(4):
                    A.e("v_exp_f32 v%d, v%d" % (T(4 + r), S(par, qt, kt, r)))
                A.e("s_nop 0")
                for r in range(4):
                    A.e("v_add_f32 v%d, v%d, v%d" % (L(par, qt), L(par, qt), T(4 + r)))
                for j in range(2):
                    A.e("v_cvt_pk_bf16_f32 v%d, v%d, v%d" % (P(par, qt, kt // 2, 2 * (kt % 2) + j), T(4 + 2 * j), T(5 + 2 * j)))
        A.e("s_nop 1")
        A.e("s_setpc_b64 %s" % sRET)

    def final(self):
        A = self.A
        par, slot = 1, 0
        INV = lambda qt: NEGM(qt)
        fill0 = []
        for qt in range(4):
            fill0 += xlane("v_add_f32", L(par, qt), T(0))
            fill0.append(TR("v_rcp_f32 v%d, v%d" % (INV(qt), L(par, qt))))
        fill0.append(V("v_lshlrev_b32 v%d, 4, v%d" % (T(7), vLANE)))

        def norm(s):
            out = []
            for qt in range(4):
                R = 32 * (s % 2) + 8 * qt
                for j in range(8):
                    out.append(V("v_accvgpr_read_b32 v%d, a%d" % (R + j, O(2 * s + j // 4, qt, j % 4))))
                for j in range(8):
                    out.append(V("v_mul_f32 v%d, v%d, v%d" % (R + j, R + j, INV(qt))))
                D = 64 + 16 * (s % 2) + 4 * qt
                for j in range(4):
                    out.append(V("v_cvt_pk_bf16_f32 v%d, v%d, v%d" % (D + j, R + 2 * j, R + 2 * j + 1)))
                out.append(SA("s_nop 0"))
                out.append(("vm", "buffer_store_dwordx4 %s, v%d, %s, %s offen offset:%d sc1" % (vr(D), T(7), sWS, sOO, 1024 * qt), "ost"))
            out.append(SA("s_add_u32 %s, %s, 4096" % (sOO, sOO)))
            return out

        for b in range(4):
            pre, pin = {0: [("need", ["vb%d" % (b % 2)], [])]}, {}
            mf = self.pv_block(par, b, b % 2)
            if b < 3:
                for j, r in enumerate(self.v_reads(slot, b + 1, (b + 1) % 2)):
                    addto(pin, j, r)
            weave(A, mf, pre, pin, {}, fill0 if b == 0 else norm(b - 1), 0 if b == 0 else 5, 16)
        A.e("s_nop 7")
        A.items(norm(3))

    def ffn_weights(self):
        A = self.A
        A.e("s_bitcmp1_b32 %s, 0" % sW)
        A.e("s_cselect_b32 s20, s6, s4")
        A.e("s_cselect_b32 s21, s7, s5")
        A.e("s_mov_b32 s22, 2211840")
        A.e("s_mov_b32 s23, 0x00020000")
        A.e("s_mov_b32 s28, s94")
        A.e("s_mov_b32 s29, s95")
        A.e("s_mov_b32 s30, 2211840")
        A.e("s_mov_b32 s31, 0x00020000")
        A.e("v_mul_u32_u24 v%d, 3456, v%d" % (T(0), vLANE))
        A.e("v_lshlrev_b32 v%d, 4, v%d" % (T(1), vLANE))
        A.e("s_lshr_b32 %s, %s, 1" % (sT0, sW))
        A.e("s_mul_i32 s84, %s, %d" % (sT0, 320 * 3456))
        A.e("s_mul_i32 s85, %s, 5120" % sT0)
        A.e("s_and_b32 %s, %s, 1" % (sT0, sW))
        A.e("s_mul_i32 %s, %s, 10240" % (sT0, sT0))
        A.e("s_add_u32 s85, s85, %s" % sT0)
        A.e("s_lshl_b32 %s, %s, 4" % (sT0, sCG))
        A.e("s_add_u32 s84, s84, %s" % sT0)
        A.e("s_cmp_ge_u32 s2, %d" % NFF)
        A.e("s_cmov_b32 s84, 0x1000000")
        for i in range(5):
            A.e("s_add_u32 m0, s85, %d" % (F_GU + 1024 * i))
            A.e("s_add_u32 %s, s84, %d" % (sT0, 64 * 3456 * i))
            A.vmop("buffer_load_dwordx4 v%d, %s, %s offen lds" % (T(0), sGU, sT0), "ffw")
        A.e("s_mul_i32 s84, %s, 10240" % sCG)
        A.e("s_cmp_ge_u32 s2, %d" % NFF)
        A.e("s_cmov_b32 s84, 0x1000000")
        A.e("s_lshl_b32 s85, %s, 10" % sW)
        A.e("s_add_u32 s84, s84, s85")
        for i in range(3):
            A.e("s_add_u32 m0, s85, %d" % (F_WD + 4096 * i))
            A.e("s_add_u32 %s, s84, %d" % (sT0, 4096 * i))
            if i == 2:
                A.e("s_cmp_ge_u32 %s, 2" % sW)
                A.e("s_cbranch_scc1 L_ffw_skip")
                A.e("buffer_load_dwordx4 v%d, %s, %s offen lds" % (T(1), sDN, sT0))
                A.label("L_ffw_skip")
            else:
                A.vmop("buffer_load_dwordx4 v%d, %s, %s offen lds" % (T(1), sDN, sT0), "ffw")

    def spin(self, name, load, test, done_branch):
        t = ["L_slow_%s:" % name, "    s_mov_b32 %s, 200000" % sT0, "L_spin_%s:" % name, "    " + load + " sc0 sc1", "    s_waitcnt vmcnt(0)"]
        t += ["    " + x for x in test]
        t += ["    %s L_ok_%s" % (done_branch, name), "    s_sleep 8", "    s_sub_u32 %s, %s, 1" % (sT0, sT0),
              "    s_cmp_lg_u32 %s, 0" % sT0, "    s_cbranch_scc1 L_spin_%s" % name, "    s_branch L_ok_%s" % name]
        self.tail += t

    def hooks(self):
        A = self.A
        back = "s_branch L_att_loop"
        A.label("L_hook_0")
        A.e("v_and_b32 v%d, 31, v%d" % (T(0), vLANE))
        A.e("v_lshlrev_b32 v%d, 2, v%d" % (T(0), T(0)))
        ld = "buffer_load_dword v%d, v%d, %s, 0 offen" % (vPOLL, T(0), sDBG)
        A.e(ld)
        A.e(back)
        A.label("L_hook_1")
        A.e("v_and_b32 v%d, 31, v%d" % (T(0), vLANE))
        A.e("v_lshlrev_b32 v%d, 2, v%d" % (T(0), T(0)))
        A.e("v_cmp_eq_u32 vcc, 0, v%d" % vPOLL)
        A.e("s_cbranch_vccnz L_slow_key")
        self.spin("key", ld, ["v_cmp_eq_u32 vcc, 0, v%d" % vPOLL], "s_cbranch_vccz")
        A.label("L_ok_key")
        A.e("v_lshlrev_b32 v%d, 2, v%d" % (T(1), vLANE))
        for n in (8, 4, 2, 1):
            A.e("s_nop 1")
            A.e("v_max_u32_dpp v%d, v%d, v%d row_ror:%d row_mask:0xf bank_mask:0xf" % (vPOLL, vPOLL, vPOLL, n))
        A.e("s_nop 0")
        A.e("v_readlane_b32 %s, v%d, 0" % (sKEY, vPOLL))
        A.e("v_readlane_b32 %s, v%d, 16" % (sT0, vPOLL))
        A.e("s_nop 3")
        A.e("s_max_u32 %s, %s, %s" % (sKEY, sKEY, sT0))
        A.e("s_and_b32 %s, %s, 0xffff" % (sIDX, sKEY))
        A.e("s_sub_u32 %s, 0xffff, %s" % (sIDX, sIDX))
        A.e("s_lshl_b32 %s, %s, 8" % (sT1, sW))
        A.e("s_add_u32 m0, %s, %d" % (sT1, F_XROW))
        A.e("s_mul_i32 %s, %s, 1280" % (sT0, sIDX))
        A.e("s_add_u32 %s, %s, %s" % (sT1, sT1, sT0))
        A.e("buffer_load_dword v%d, %s, %s offen lds" % (T(1), sX, sT1))
        A.e("s_mov_b32 m0, %d" % (F_XROW + 1024))
        A.e("s_add_u32 %s, %s, 1024" % (sT1, sT0))
        A.e("buffer_load_dword v%d, %s, %s offen lds" % (T(1), sX, sT1))
        A.e("s_lshl_b32 %s, %s, 2" % (sT0, sIDX))
        A.e("s_add_u32 %s, %s, %d" % (sT0, sT0, WS_STATS))
        A.e("buffer_load_dword v%d, off, %s, %s" % (vSTAT, sWS, sT0))
        A.e(back)
        A.label("L_hook_2")
        a, b, c = 245, 246, 247
        A.e("s_mul_i32 %s, %s, 160" % (sT0, sW))
        A.e("v_lshrrev_b32 v%d, 4, v%d" % (c, vLANE))
        A.e("v_bfe_u32 v%d, v%d, 2, 2" % (a, vLANE))
        A.e("v_lshl_add_u32 v%d, v%d, 3, v%d" % (a, c, a))
        A.e("v_add_u32 v%d, %s, v%d" % (a, sT0, a))
        A.e("v_lshlrev_b32 v%d, 4, v%d" % (a, a))
        A.e("v_and_b32 v%d, 1, v%d" % (b, vLANE))
        A.e("v_lshl_add_u32 v%d, v%d, 3, v%d" % (a, b, a))
        A.e("v_bfe_u32 v%d, v%d, 1, 1" % (b, vLANE))
        A.e("v_mul_u32_u24 v%d, 10240, v%d" % (b, b))
        A.e("s_mov_b32 %s, %d" % (sT1, F_GU))
        A.e("v_add3_u32 v%d, v%d, v%d, %s" % (a, a, b, sT1))
        A.e("s_lshl_b32 %s, %s, 1" % (sT0, sT0))
        A.e("s_add_u32 %s, %s, %d" % (sT0, sT0, F_XROW))
        A.e("v_lshl_add_u32 v%d, v%d, 4, %s" % (b, c, sT0))
        A.e("s_lshl_b32 %s, %s, 7" % (sT0, sW))
        A.e("s_add_u32 %s, %s, %d" % (sT0, sT0, F_PART))
        A.e("v_lshl_add_u32 v%d, v%d, 4, %s" % (c, c, sT0))
        for s_ in range(5):
            for hf in range(2):
                A.e("ds_read_b64_tr_b16 %s, v%d offset:%d" % (ar(208 + 4 * s_ + 2 * hf, 2), a, 512 * s_ + 64 * hf))
            A.e("ds_read_b128 %s, v%d offset:%d" % (ar(228 + 4 * s_), b, 64 * s_))
            if s_ == 2:
                A.e("s_waitcnt lgkmcnt(8)")
        A.e("v_mov_b32 v%d, 0x3f803f80" % T(0))
        for j in range(4):
            A.e("v_accvgpr_write_b32 a%d, v%d" % (248 + j, T(0)))
        A.e("s_waitcnt lgkmcnt(0)")
        for s_ in range(5):
            A.e(mfma(vr(T(0)), ar(208 + 4 * s_), ar(228 + 4 * s_), "0" if s_ == 0 else vr(T(0))))
        for s_ in range(5):
            A.e(mfma(vr(T(4)), ar(208 + 4 * s_), ar(248), "0" if s_ == 0 else vr(T(4))))
        A.e("s_nop 7")
        A.e("ds_write_b128 v%d, %s" % (c, vr(T(0))))
        A.e("ds_write_b128 v%d, %s offset:64" % (c, vr(T(4))))
        A.e(back)
        A.label("L_hook_3")
        A.e("v_and_b32 v%d, 15, v%d" % (a, vLANE))
        A.e("v_lshlrev_b32 v%d, 2, v%d" % (a, a))
        A.e("v_add_u32 v%d, %d, v%d" % (a, F_PART, a))
        A.e("v_min_u32 v252, 39, v%d" % vLANE)
        for w in range(4):
            A.e("ds_read2_b32 %s, v%d offset0:%d offset1:%d" % (vr(T(2 * w), 2), a, 32 * w, 32 * w + 16))
        A.e("s_mul_i32 %s, %s, 320" % (sT0, sW))
        A.e("s_add_u32 %s, %s, %d" % (sT0, sT0, F_WD))
        A.e("v_lshl_add_u32 v252, v252, 3, %s" % sT0)
        A.e("v_lshlrev_b32 v%d, 16, v%d" % (b, vSTAT))
        A.e("v_and_b32 v%d, 0xffff0000, v%d" % (c, vSTAT))
        A.e("v_rcp_f32 v%d, v%d" % (c, c))
        A.e("s_waitcnt lgkmcnt(0)")
        for j in (0, 1):
            A.e("v_add_f32 v%d, v%d, v%d" % (T(j), T(j), T(2 + j)))
            A.e("v_add_f32 v%d, v%d, v%d" % (T(4 + j), T(4 + j), T(6 + j)))
            A.e("v_add_f32 v%d, v%d, v%d" % (T(j), T(j), T(4 + j)))
        A.e("v_fma_f32 v%d, -v%d, v%d, v%d" % (a, b, T(1), T(0)))
        A.e("v_mul_f32 v%d, v%d, v%d" % (a, a, c))
        for j in range(4):
            A.e("ds_read_b64 %s, v252 offset:%d" % (vr(T(2 * j), 2), 1280 * j))
        A.items(bf16r(a, a))
        A.e("v_mul_f32 v%d, %s, v%d" % (b, fbits(-math.log2(math.e)), a))
        A.e("v_exp_f32 v%d, v%d" % (b, b))
        A.e("v_mov_b32_dpp v%d, v%d row_ror:8 row_mask:0xf bank_mask:0xf" % (c, a))
        A.e("v_add_f32 v%d, 1.0, v%d" % (b, b))
        A.e("v_rcp_f32 v%d, v%d" % (b, b))
        A.e("s_nop 0")
        A.e("v_mul_f32 v%d, v%d, v%d" % (a, a, b))
        A.items(bf16r(a, a))
        A.e("v_mul_f32 v%d, v%d, v%d" % (a, a, c))
        A.items(bf16r(a, a))
        A.e("v_lshlrev_b32 v253, 4, v%d" % vLANE)
        for j in range(8):
            A.e("v_readlane_b32 s%d, v%d, %d" % (84 + j, a, j))
        A.e("v_mov_b32 v250, %d" % WS_SRD)
        A.e("v_cmp_gt_u32 vcc, 40, v%d" % vLANE)
        A.e("s_mul_i32 %s, %s, 2560" % (sT0, sCG))
        A.e("s_mul_i32 %s, %s, 640" % (sT1, sW))
        A.e("v_cndmask_b32 v253, v250, v253, vcc")
        A.e("s_add_u32 %s, %s, %s" % (sT0, sT0, sT1))
        A.e("s_add_u32 %s, %s, %d" % (sT0, sT0, WS_YP))
        A.e("s_cmp_ge_u32 s2, %d" % NFF)
        A.e("s_cmov_b32 %s, %d" % (sT0, WS_SRD))
        for half in range(2):
            A.e("s_waitcnt lgkmcnt(0)")
            for j in range(4):
                for e in range(4):
                    src = T(2 * j + e // 2)
                    A.e(("v_and_b32 v250, 0xffff0000, v%d" if e % 2 else "v_lshlrev_b32 v250, 16, v%d") % src)
                    if half == 0 and j == 0:
                        A.e("v_mul_f32 v%d, s84, v250" % (246 + e))
                    else:
                        A.e("v_fmac_f32 v%d, s%d, v250" % (246 + e, 84 + 4 * half + j))
            if half == 0:
                for j in range(4):
                    A.e("ds_read_b64 %s, v252 offset:%d" % (vr(T(2 * j), 2), 1280 * (4 + j)))
        A.e("buffer_store_dwordx4 v[246:249], v253, %s, %s offen sc1" % (sWS, sT0))
        A.e(back)
        for k in (4, 5):
            A.label("L_hook_%d" % k)
            A.e("s_cmp_lg_u32 %s, 0" % sW)
            A.e("s_cbranch_scc1 L_att_loop")
            A.e("s_cmp_ge_u32 s2, %d" % NFF)
            A.e("s_cbranch_scc1 L_att_loop")
            A.e("s_bitcmp1_b32 s2, 3")
            A.e("s_cbranch_scc%d L_att_loop" % (k - 4))
            A.e("v_lshlrev_b32 v%d, 12, v%d" % (T(0), vLANE))
            A.e("v_mov_b32 v%d, 1" % T(1))
            A.e("buffer_atomic_add v%d, v%d, %s, 0 offen offset:128" % (T(1), T(0), sDBG))
            A.e(back)

    def ffn_poll(self):
        self.A.vmop("buffer_load_dword v%d, off, %s, 0 offset:128" % (vPOLL, sDBG), "poll")

    def ffn_check(self):
        A = self.A
        test = ["v_cmp_gt_u32 vcc, %d, v%d" % (NFF, vPOLL)]
        A.need(vm=["poll"])
        A.e(test[0])
        A.e("s_cbranch_vccnz L_slow_cnt")
        self.spin("cnt", "buffer_load_dword v%d, off, %s, 0 offset:128" % (vPOLL, sDBG), test, "s_cbranch_vccz")
        A.label("L_ok_cnt")

    def ffn_gather(self):
        A = self.A
        A.e("s_lshl_b32 %s, s2, 4" % sT0)
        A.e("s_add_u32 %s, %s, %d" % (sT0, sT0, WS_YP))
        A.e("s_cmp_ge_u32 s2, 160")
        A.e("s_cmov_b32 %s, %d" % (sT0, WS_SRD))
        A.e("s_cmp_lg_u32 %s, 0" % sW)
        A.e("s_cmov_b32 %s, %d" % (sT0, WS_SRD))
        A.e("v_mul_u32_u24 v112, 2560, v%d" % vLANE)
        A.e("v_mov_b32 v113, %d" % WS_SRD)
        A.e("v_cmp_gt_u32 vcc, %d, v%d" % (NFF - 192, vLANE))
        for j in range(3):
            A.vmop("buffer_load_dwordx4 %s, v112, %s, %s offen" % (vr(96 + 4 * j), sWS, sT0), "yp")
            A.e("s_add_u32 %s, %s, %d" % (sT0, sT0, 64 * 2560))
        A.e("v_cndmask_b32 v112, v113, v112, vcc")
        A.vmop("buffer_load_dwordx4 %s, v112, %s, %s offen" % (vr(108), sWS, sT0), "yp")

    def ffn_finish(self):
        A = self.A
        A.e("s_cmp_ge_u32 s2, 160")
        A.e("s_cbranch_scc1 L_ffn_done")
        A.e("s_cmp_lg_u32 %s, 0" % sW)
        A.e("s_cbranch_scc1 L_ffn_done")
        A.need(vm=["yp"])
        A.e("v_mov_b32 v112, %s" % sKEY)
        A.e("v_ashrrev_i32 v113, 31, v112")
        A.e("v_not_b32 v113, v113")
        A.e("v_or_b32 v113, 0x80000000, v113")
        A.e("v_xor_b32 v112, v112, v113")
        A.e("v_and_b32 v112, 0xffff0000, v112")
        A.e("v_mul_f32 v112, %s, v112" % fbits(-math.log2(math.e)))
        A.e("v_exp_f32 v112, v112")
        for e in range(4):
            A.e("v_add_f32 v%d, v%d, v%d" % (96 + e, 96 + e, 100 + e))
            A.e("v_add_f32 v%d, v%d, v%d" % (104 + e, 104 + e, 108 + e))
        A.e("v_add_f32 v112, 1.0, v112")
        A.e("v_rcp_f32 v112, v112")
        for e in range(4):
            A.e("v_add_f32 v%d, v%d, v%d" % (96 + e, 96 + e, 104 + e))
        for n in (8, 4, 2, 1):
            for e in range(4):
                A.e("v_add_f32_dpp v%d, v%d, v%d row_ror:%d row_mask:0xf bank_mask:0xf" % (96 + e, 96 + e, 96 + e, n))
        for sw in ("v_permlane32_swap_b32", "v_permlane16_swap_b32"):
            for e in range(4):
                A.e("v_mov_b32 v%d, v%d" % (100 + e, 96 + e))
            A.e("s_nop 0")
            for e in range(4):
                A.e("%s v%d, v%d" % (sw, 96 + e, 100 + e))
            for e in range(4):
                A.e("v_add_f32 v%d, v%d, v%d" % (96 + e, 96 + e, 100 + e))
        A.items(bf16r(112, 112))
        for e in range(4):
            A.items(bf16r(96 + e, 96 + e))
            A.e("v_mul_f32 v%d, v%d, v112" % (96 + e, 96 + e))
            A.items(bf16r(96 + e, 96 + e))
        A.e("s_lshl_b32 %s, s2, 4" % sT0)
        A.e("s_add_u32 %s, %s, %d" % (sT0, sT0, WS_YV))
        A.e("v_mov_b32 v100, %s" % sIDX)
        A.e("buffer_store_dwordx4 v[96:99], off, %s, %s" % (sWS, sT0))
        A.e("s_mov_b32 %s, %d" % (sT0, WS_IDX))
        A.e("buffer_store_dword v100, off, %s, %s" % (sWS, sT0))
        A.label("L_ffn_done")

    def build(self):
        A = self.A
        self.entry()
        self.proj()
        self.finalize_q()
        self.first_tile()
        self.iteration(0, pv=False)
        self.ffn_weights()
        self.iteration(1, zero=True)
        self.stamp()
        A.e("s_mov_b32 %s, 7" % sCNT)
        A.raw(".p2align 6")
        A.label("L_att_loop")
        q0 = (list(A.ds), list(A.vm))
        for t in range(2, 6):
            self.iteration(t)
        assert list(A.ds) == q0[0] and [x for x in A.vm] == [x for x in q0[1] if x.startswith("st")][-len(A.vm):], (q0, A.ds, A.vm)
        A.e("s_sub_u32 %s, %s, 1" % (sCNT, sCNT))
        for k in range(6):
            A.e("s_cmp_eq_u32 %s, %d" % (sCNT, 6 - k))
            A.e("s_cbranch_scc1 L_hook_%d" % k)
        self.stamp()
        self.ffn_poll()
        self.iteration(30, dmak=False, nextk=False)
        self.ffn_check()
        self.iteration(31, qk=False, dmak=False, dmav=False, nextk=False)
        self.stamp()
        self.ffn_gather()
        self.final()
        self.ffn_finish()
        self.stamp()
        self.stamp_store()
        A.label("L_att_end")
        A.e("s_endpgm")
        self.hooks()
        for l in self.tail:
            A.raw(l)
        self.rescale(0)
        self.rescale(1)
        return A.text()


def descriptor(name, vgpr, accum, sgpr=102):
    return """.amdhsa_kernel %s
  .amdhsa_next_free_vgpr %d
  .amdhsa_next_free_sgpr %d
  .amdhsa_accum_offset %d
  .amdhsa_group_segment_fixed_size 0
  .amdhsa_kernarg_size 104
  .amdhsa_user_sgpr_count 2
  .amdhsa_user_sgpr_kernarg_segment_ptr 1
  .amdhsa_system_sgpr_workgroup_id_x 1
  .amdhsa_float_denorm_mode_32 3
.end_amdhsa_kernel
""" % (name, vgpr, sgpr, accum)
```

```python
import math
from asmlib import Asm, weave, addto
from gen_att import (WS_O, WS_WOT, WS_STATS, WS_YV, WS_IDX, WS_TS, WS_SRD, fbits, vr, ar, mfma, V, TR, SA)

DEPTH = 5
LDS_BYTES = 61440
sX, sOUT, sWS = "s[8:11]", "s[12:15]", "s[16:19]"
sW, sA, sO, sT0, sT1, sQ, sN, sE, sIDX = ("s%d" % i for i in range(20, 29))
sTS = 32
AF = lambda k, nt: (k % DEPTH) * 36 + 4 * nt
BF = lambda k, qs: (k % DEPTH) * 36 + 20 + 4 * qs
E0 = DEPTH * 36
XRAW = E0
G = E0 + 10
XF = E0 + 30
vA0, vA1, vE, vST, vM, vRC, vT0, vT1, vT2, vT3 = (E0 + 50 + i for i in range(10))
VO = lambda qs: E0 + 60 + qs
vLW = lambda j: E0 + 64 + j
vLR = E0 + 67
vLANE = E0 + 68
ACC = lambda nt, qs, r=0: (nt * 4 + qs) * 4 + r
assert vLANE < 256


class GenOut:
    def __init__(self, name, stamps=False):
        self.A = Asm()
        self.name = name
        self.stamps = stamps
        self.nstamp = 0

    def stamp(self):
        if not self.stamps:
            return
        r = sTS + 2 * self.nstamp
        self.A.e("s_memtime s[%d:%d]" % (r, r + 1))
        self.A.e("s_waitcnt lgkmcnt(0)")
        self.nstamp += 1

    def loads(self, k):
        out = []
        for nt in range(5):
            out.append(("vm", "buffer_load_dwordx4 %s, v%d, %s, %s offen offset:%d" % (vr(AF(k, nt)), vA0 if nt < 4 else vA1, sWS, sA, 1024 * (nt % 4)), "k%d" % k))
        for qs in range(4):
            out.append(("vm", "buffer_load_dwordx4 %s, v%d, %s, %s offen" % (vr(BF(k, qs)), VO(qs), sWS, sO), "k%d" % k))
        return out

    def adv(self):
        return [SA("s_add_u32 %s, %s, 5120" % (sA, sA)), SA("s_add_u32 %s, %s, 4096" % (sO, sO))]

    def gate(self):
        out = [("need", [], ["ex", "yv"]),
               V("v_lshlrev_b32 v%d, 16, v%d" % (vM, vST)), V("v_and_b32 v%d, 0xffff0000, v%d" % (vRC, vST)),
               TR("v_rcp_f32 v%d, v%d" % (vRC, vRC))]

        def rnd(a, b):
            return [V("v_cvt_pk_bf16_f32 v%d, v%d, v%d" % (b, a, b)), V("v_lshlrev_b32 v%d, 16, v%d" % (a, b)),
                    V("v_and_b32 v%d, 0xffff0000, v%d" % (b, b))]
        for j in range(10):
            x0, x1, g0, g1 = XF + 2 * j, XF + 2 * j + 1, G + 2 * j, G + 2 * j + 1
            out += [V("v_lshlrev_b32 v%d, 16, v%d" % (x0, XRAW + j)), V("v_and_b32 v%d, 0xffff0000, v%d" % (x1, XRAW + j)),
                    V("v_sub_f32 v%d, v%d, v%d" % (vT0, x0, vM)), V("v_sub_f32 v%d, v%d, v%d" % (vT1, x1, vM))]
            out += rnd(vT0, vT1)
            out += [V("v_mul_f32 v%d, v%d, v%d" % (vT0, vT0, vRC)), V("v_mul_f32 v%d, v%d, v%d" % (vT1, vT1, vRC))] + rnd(vT0, vT1)
            out += [V("v_add_f32 v%d, v%d, v%d" % (g0, g0, vT0)), V("v_add_f32 v%d, v%d, v%d" % (g1, g1, vT1))] + rnd(g0, g1)
            c = fbits(-math.log2(math.e))
            out += [V("v_mul_f32 v%d, %s, v%d" % (vT0, c, g0)), V("v_mul_f32 v%d, %s, v%d" % (vT1, c, g1)),
                    TR("v_exp_f32 v%d, v%d" % (vT0, vT0)), TR("v_exp_f32 v%d, v%d" % (vT1, vT1)), SA("s_nop 0"),
                    V("v_add_f32 v%d, 1.0, v%d" % (vT0, vT0)), V("v_add_f32 v%d, 1.0, v%d" % (vT1, vT1)),
                    TR("v_rcp_f32 v%d, v%d" % (vT0, vT0)), TR("v_rcp_f32 v%d, v%d" % (vT1, vT1)), SA("s_nop 0"),
                    V("v_mul_f32 v%d, v%d, v%d" % (g0, g0, vT0)), V("v_mul_f32 v%d, v%d, v%d" % (g1, g1, vT1))] + rnd(g0, g1)
        return out

    def build(self):
        A = self.A
        A.raw(".globl %s" % self.name)
        A.raw(".p2align 8")
        A.raw(".type %s,@function" % self.name)
        A.label(self.name)
        A.e("s_cmp_ge_u32 s2, 256")
        A.e("s_cbranch_scc1 L_out_end")
        A.e("s_load_dwordx2 s[4:5], s[0:1], 0")
        A.e("s_load_dwordx2 s[6:7], s[0:1], 80")
        A.e("s_load_dwordx2 s[30:31], s[0:1], 96")
        if self.stamps:
            A.e("s_memrealtime s[60:61]")
        A.e("v_lshrrev_b32 v1, 6, v0")
        A.e("v_and_b32 v%d, 63, v0" % vLANE)
        A.e("v_readfirstlane_b32 %s, v1" % sW)
        A.e("s_and_b32 %s, s2, 3" % sT0)
        A.e("s_lshl_b32 %s, %s, 3" % (sT0, sT0))
        A.e("s_bfe_u32 %s, s2, 0x30003" % sT1)
        A.e("s_add_u32 %s, %s, %s" % (sQ, sT0, sT1))
        A.e("s_bfe_u32 %s, s2, 0x10002" % sT0)
        A.e("s_lshl_b32 %s, %s, 2" % (sT0, sT0))
        A.e("s_lshr_b32 %s, s2, 6" % sT1)
        A.e("s_add_u32 %s, %s, %s" % (sN, sT0, sT1))
        A.e("s_lshl_b32 %s, %s, 5" % (sT1, sW))
        A.e("s_lshl_b32 %s, %s, 7" % (sT0, sN))
        A.e("s_add_u32 %s, %s, %s" % (sT0, sT0, sT1))
        A.e("s_mul_i32 %s, %s, 5120" % (sA, sT0))
        A.e("s_add_u32 %s, %s, %d" % (sA, sA, WS_WOT))
        A.e("s_lshl_b32 %s, %s, 7" % (sT0, sQ))
        A.e("s_add_u32 %s, %s, %s" % (sT0, sT0, sT1))
        A.e("s_lshl_b32 %s, %s, 12" % (sO, sT0))
        A.e("v_lshlrev_b32 v%d, 4, v%d" % (vA0, vLANE))
        A.e("v_add_u32 v%d, 4096, v%d" % (vA1, vA0))
        for qs in range(4):
            A.e("s_add_u32 %s, %s, %d" % (sT0, sW, qs))
            A.e("s_and_b32 %s, %s, 3" % (sT0, sT0))
            A.e("s_lshl_b32 %s, %s, 10" % (sT1, sT0))
            A.e("v_add_u32 v%d, %s, v%d" % (VO(qs), sT1, vA0))
            A.e("s_mul_i32 %s, %s, 15360" % (sT1, sT0))
            if qs == 0:
                A.e("v_add_u32 v%d, %s, v%d" % (vLR, sT1, vA0))
            else:
                A.e("s_add_u32 %s, %s, %d" % (sT1, sT1, 5120 * (qs - 1)))
                A.e("v_add_u32 v%d, %s, v%d" % (vLW(qs - 1), sT1, vA0))
        A.e("s_lshl_b32 %s, %s, 2" % (sT0, sQ))
        A.e("s_add_u32 %s, %s, %s" % (sT0, sT0, sW))
        A.e("s_lshl_b32 %s, %s, 4" % (sT0, sT0))
        A.e("v_and_b32 v1, 15, v0")
        A.e("v_add_u32 v%d, %s, v1" % (vT2, sT0))
        A.e("v_bfe_u32 v2, v0, 4, 2")
        A.e("v_mul_u32_u24 v%d, 40, v2" % vT3)
        A.e("v_mul_u32_u24 v1, 1280, v%d" % vT2)
        A.e("s_mul_i32 %s, %s, 160" % (sE, sN))
        A.e("v_add3_u32 v%d, v1, v%d, %s" % (vE, vT3, sE))
        A.e("v_lshlrev_b32 v%d, 2, v%d" % (vT0, vT2))
        A.e("v_add_u32 v%d, %d, v%d" % (vT0, WS_STATS, vT0))
        A.e("s_waitcnt lgkmcnt(0)")
        for srd, lo, size in ((8, 4, 2621440), (12, 6, 2621440), (16, 30, WS_SRD)):
            A.e("s_mov_b32 s%d, s%d" % (srd, lo))
            A.e("s_mov_b32 s%d, s%d" % (srd + 1, lo + 1))
            A.e("s_mov_b32 s%d, %d" % (srd + 2, size))
            A.e("s_mov_b32 s%d, 0x00020000" % (srd + 3))
        A.e("s_add_u32 s30, s30, %d" % WS_IDX)
        A.e("s_addc_u32 s31, s31, 0")
        A.e("s_load_dword %s, s[30:31], 0" % sIDX)
        self.stamp()
        for k in range(DEPTH):
            A.items(self.loads(k) + self.adv())
        A.vmop("buffer_load_dwordx4 %s, v%d, %s, 0 offen" % (vr(XRAW), vE, sX), "ex")
        A.vmop("buffer_load_dwordx4 %s, v%d, %s, 0 offen offset:16" % (vr(XRAW + 4), vE, sX), "ex")
        A.vmop("buffer_load_dwordx2 %s, v%d, %s, 0 offen offset:32" % (vr(XRAW + 8, 2), vE, sX), "ex")
        A.vmop("buffer_load_dword v%d, v%d, %s, 0 offen" % (vST, vT0, sWS), "ex")
        A.e("s_lshl_b32 %s, %s, 1" % (sT0, sE))
        A.e("s_add_u32 %s, %s, %d" % (sT0, sT0, WS_YV))
        A.e("v_lshl_add_u32 v%d, v%d, 1, %s" % (vT3, vT3, sT0))
        A.e("v_mov_b32 v%d, %d" % (vT1, WS_SRD))
        A.e("s_waitcnt lgkmcnt(0)")
        A.e("v_cmp_eq_u32 vcc, %s, v%d" % (sIDX, vT2))
        A.e("s_nop 1")
        A.e("v_cndmask_b32 v%d, v%d, v%d, vcc" % (vT3, vT1, vT3))
        for j in range(5):
            A.vmop("buffer_load_dwordx4 %s, v%d, %s, 0 offen offset:%d" % (vr(G + 4 * j), vT3, sWS, 16 * j), "yv")
        gate = self.gate()
        nfill = 8
        per = (len(gate) + nfill - 1) // nfill
        for k in range(32):
            mf, pre, pin, post = [], {0: [("need", [], ["k%d" % k])]}, {}, {}
            for nt in range(5):
                for qs in range(4):
                    mf.append(mfma(ar(ACC(nt, qs)), vr(AF(k, nt)), vr(BF(k, qs)), "0" if k == 0 else ar(ACC(nt, qs))))
            if k + DEPTH < 32:
                ld = self.loads(k + DEPTH)
                for nt in range(4):
                    addto(pin, 4 * nt + 3, ld[nt])
                for qs in range(4):
                    addto(pin, 16 + qs, ld[5 + qs])
                addto(post, 19, ld[4], *self.adv())
            fill = gate[(k - 2) * per:(k - 1) * per] if 2 <= k < 2 + nfill else []
            weave(A, mf, pre, pin, post, fill)
            if k == 0:
                self.stamp()
        self.stamp()
        A.e("s_nop 7")
        for qs in range(1, 4):
            for nt in range(5):
                A.dsop("ds_write_b128 v%d, %s offset:%d" % (vLW(qs - 1), ar(ACC(nt, qs)), 1024 * nt), "w")
        for nt in range(5):
            for r in range(4):
                A.e("v_accvgpr_read_b32 v%d, a%d" % (4 * nt + r, ACC(nt, 0, r)))
        A.need(ds=["w"])
        A.e("s_barrier")
        for j in range(3):
            for nt in range(5):
                A.dsop("ds_read_b128 %s, v%d offset:%d" % (vr(20 + 20 * j + 4 * nt), vLR, 1024 * (5 * j + nt)), "r%d" % j)
        for j in range(3):
            A.need(ds=["r%d" % j])
            for e in range(20):
                A.e("v_add_f32 v%d, v%d, v%d" % (e, e, 20 + 20 * j + e))
        for e in range(20):
            A.e("v_fma_f32 v%d, v%d, v%d, v%d" % (e, e, G + e, XF + e))
        for j in range(10):
            A.e("v_cvt_pk_bf16_f32 v%d, v%d, v%d" % (80 + j, 2 * j, 2 * j + 1))
        A.e("s_nop 0")
        A.vmop("buffer_store_dwordx4 %s, v%d, %s, 0 offen" % (vr(80), vE, sOUT), "o")
        A.vmop("buffer_store_dwordx4 %s, v%d, %s, 0 offen offset:16" % (vr(84), vE, sOUT), "o")
        A.vmop("buffer_store_dwordx2 %s, v%d, %s, 0 offen offset:32" % (vr(88, 2), vE, sOUT), "o")
        if self.stamps:
            self.stamp()
            A.e("s_memrealtime s[62:63]")
            A.drain()
            A.e("s_lshl_b32 %s, s2, 2" % sT0)
            A.e("s_add_u32 %s, %s, %s" % (sT0, sT0, sW))
            A.e("s_lshl_b32 %s, %s, 7" % (sT0, sT0))
            A.e("s_add_u32 %s, %s, %d" % (sT0, sT0, WS_TS + (1 << 20)))
            A.e("v_mov_b32 v1, 0")
            for i in range(self.nstamp):
                A.e("v_mov_b32 v0, s%d" % (sTS + 2 * i))
                A.e("buffer_store_dword v0, v1, %s, %s offen offset:%d" % (sWS, sT0, 4 * i))
            A.e("v_mov_b32 v0, s60")
            A.e("buffer_store_dword v0, v1, %s, %s offen offset:%d" % (sWS, sT0, 120))
            A.e("v_mov_b32 v0, s62")
            A.e("buffer_store_dword v0, v1, %s, %s offen offset:%d" % (sWS, sT0, 124))
        A.label("L_out_end")
        A.e("s_endpgm")
        return A.text()
```

```python
import sys
sys.path.insert(0, "dev")
import gen_att, gen_out

NAME = "recurrent_scan__mha_block_cached__moe_arch_mod__prompt"

def build(stamps=False, **kw):
    ref = open("cdna_kernels/%s.s.ref" % NAME).read().splitlines()
    head = [l for l in ref if l.startswith(";") and "@launch" not in l and "Override launch" not in l and "grid=ceil" not in l]
    head = head[:14]
    k1, k2 = "att_kernel", "outproj_kernel"
    s = "\n".join(head) + "\n"
    s += "; @launch kernel=%s grid=(256,1,1) block=(256,1,1) lds=%d\n" % (k1, gen_att.LDS_BYTES)
    s += "; @launch kernel=%s grid=(256,1,1) block=(256,1,1) lds=%d\n" % (k2, gen_out.LDS_BYTES)
    s += '.amdgcn_target "amdgcn-amd-amdhsa--gfx950"\n.text\n'
    s += gen_att.Gen(k1, stamps, **kw).build()
    s += gen_out.GenOut(k2, stamps).build()
    s += '.section .rodata,"a"\n.p2align 6\n'
    s += gen_att.descriptor(k1, 512, 256)
    s += gen_att.descriptor(k2, 336, 256)
    return s

if __name__ == "__main__":
    out = sys.argv[1] if len(sys.argv) > 1 else "k.s"
    open(out, "w").write(build(stamps="stamps" in sys.argv))
    print("wrote", out)
```

```python
import sys
sys.path.insert(0, "dev")
from hiprt import *

NSEG = 16
def kernel(name, body, iters, nthreads):
    loadregs = "\n".join(f"    buffer_load_dwordx4 v[{64+4*i}:{64+4*i+3}], v5, s[12:15], s23 offen offset:{(i%4)*1024}\n" + ("    s_add_u32 s23, s23, 4096\n" if i%4==3 else "") for i in range(16))
    return f"""
.globl {name}
.p2align 8
.type {name},@function
{name}:
    s_load_dwordx2 s[4:5], s[0:1], 0
    s_load_dwordx2 s[6:7], s[0:1], 8
    s_waitcnt lgkmcnt(0)
    s_mov_b32 s8, s4
    s_mov_b32 s9, s5
    s_mov_b32 s10, 0x1000000
    s_mov_b32 s11, 0x00020000
    s_mov_b32 s12, s6
    s_mov_b32 s13, s7
    s_mov_b32 s14, 0x1000000
    s_mov_b32 s15, 0x00020000
    v_and_b32 v1, 63, v0
    v_lshlrev_b32 v2, 4, v1
    v_lshlrev_b32 v3, 3, v1
    v_lshrrev_b32 v4, 6, v0
    s_nop 1
    v_readfirstlane_b32 s20, v4
    s_lshl_b32 s21, s20, 12
    s_mov_b32 m0, s21
    v_lshlrev_b32 v5, 4, v1
    s_lshl_b32 s23, s20, 14
    s_mov_b32 s22, 0
{loadregs}
    buffer_load_dwordx4 v5, s[12:15], s23 offen lds
    buffer_load_dwordx4 v5, s[12:15], s23 offen offset:1024 lds
    buffer_load_dwordx4 v5, s[12:15], s23 offen offset:2048 lds
    buffer_load_dwordx4 v5, s[12:15], s23 offen offset:3072 lds
    s_waitcnt vmcnt(0)
    s_mul_i32 s3, s2, {nthreads//64}
    s_add_u32 s3, s3, s20
    s_mul_i32 s3, s3, {NSEG*8}
    s_mov_b32 s17, {NSEG}
    s_barrier
    s_memtime s[24:25]
    s_memrealtime s[28:29]
    s_waitcnt lgkmcnt(0)
O_{name}:
    s_mov_b32 s16, {iters}
.p2align 6
L_{name}:
{body}
    s_sub_u32 s16, s16, 1
    s_cmp_lg_u32 s16, 0
    s_cbranch_scc1 L_{name}
    s_memtime s[26:27]
    s_memrealtime s[30:31]
    s_waitcnt lgkmcnt(0)
    s_sub_u32 s32, s26, s24
    s_sub_u32 s33, s30, s28
    v_mov_b32 v6, s32
    v_mov_b32 v7, s33
    v_mov_b32 v16, s3
    s_mov_b64 exec, 1
    buffer_store_dwordx2 v[6:7], v16, s[8:11], 0 offen
    s_mov_b64 exec, -1
    s_add_u32 s3, s3, 8
    s_sub_u32 s17, s17, 1
    s_cmp_lg_u32 s17, 0
    s_cbranch_scc1 O_{name}
    s_waitcnt vmcnt(0)
    s_endpgm
"""
def desc(name, nv):
    return f"""
.amdhsa_kernel {name}
  .amdhsa_next_free_vgpr {nv}
  .amdhsa_next_free_sgpr 96
  .amdhsa_accum_offset {nv//2}
  .amdhsa_group_segment_fixed_size 0
  .amdhsa_kernarg_size 16
  .amdhsa_user_sgpr_count 2
  .amdhsa_user_sgpr_kernarg_segment_ptr 1
  .amdhsa_system_sgpr_workgroup_id_x 1
.end_amdhsa_kernel
"""
def mf(i):
    a = (i % 4) * 16; x = 64 + (i % 8) * 4; y = 96 + ((i // 2) % 8) * 4
    return f"v_mfma_f32_32x32x16_bf16 a[{a}:{a+15}], v[{x}:{x+3}], v[{y}:{y+3}], a[{a}:{a+15}]"
def mf16(i):
    a = (i % 16) * 4; x = 64 + (i % 8) * 4; y = 96 + ((i // 4) % 8) * 4
    return f"v_mfma_f32_16x16x32_bf16 a[{a}:{a+3}], v[{x}:{x+3}], v[{y}:{y+3}], a[{a}:{a+3}]"
def nomf(i): return "; none"
def body(fill, n, m):
    out = []
    for i in range(n):
        out.append(m(i)); out += fill(i)
    return "\n".join("    " + l for l in out)

EXP = lambda r, i=0: f"v_exp_f32 v{r}, v{64+i%64}"
ADD = lambda r, i=0: f"v_add_f32 v{r}, v{r}, v{64+i%64}"
CVT = lambda r, i=0: f"v_cvt_pk_bf16_f32 v{r}, v{64+i%62}, v{65+i%62}"
PERM = lambda r, i=0: f"v_perm_b32 v{r}, v{64+i%62}, v{65+i%62}, s40"
RD128 = lambda i: f"ds_read_b128 a[{64+(i%8)*4}:{64+(i%8)*4+3}], v2 offset:{(i%16)*1024}"
RDTR = lambda i: f"ds_read_b64_tr_b16 a[{96+(i%8)*2}:{96+(i%8)*2+1}], v3 offset:{(i%16)*512}"
DMA = lambda i: f"buffer_load_dwordx4 v5, s[12:15], s22 offen offset:{(i%4)*1024} lds"

def soft32(i, pack=CVT):
    r = [EXP(32 + i % 4, i), ADD(40 + i % 2, i)]
    if i % 2: r.append(pack(44 + i % 4, i))
    if i % 4 == 0: r.append(RD128(i // 4))
    elif i % 4 != 3: r.append(RDTR(i))
    return r
def soft16(i, pack=CVT, rdmul=1):
    j = i // 2
    if i % 2 == 0:
        r = [EXP(32 + j % 4, j)]
        if rdmul == 2:
            if j % 4 == 0: r.append(RD128(j // 4 + 8))
            elif j % 4 != 3: r.append(RDTR(j + 8))
        return r
    r = [ADD(40 + j % 2, j)]
    if j % 2: r.append(pack(44 + j % 4, j))
    if j % 4 == 0: r.append(RD128(j // 4))
    elif j % 4 != 3: r.append(RDTR(j))
    return r
def soft32x2(i):
    r = soft32(i)
    if i % 4 == 0: r.append(RD128(i // 4 + 8))
    elif i % 4 != 3: r.append(RDTR(i + 8))
    return r

C = {
 "bare32":   (lambda i: [], 32, mf, 256, 6),
 "bare16":   (lambda i: [], 64, mf16, 256, 6),
 "cvt1":     (lambda i: [CVT(32, i)], 32, mf, 256, 6),
 "cvt3":     (lambda i: [CVT(32, i), CVT(33, i), CVT(34, i)], 32, mf, 256, 6),
 "cvt5":     (lambda i: [CVT(32+j, i) for j in range(5)], 32, mf, 256, 6),
 "perm5":    (lambda i: [PERM(32+j, i) for j in range(5)], 32, mf, 256, 6),
 "expcvt":   (lambda i: [EXP(40, i), CVT(32, i), ADD(33), ADD(34)], 32, mf, 256, 6),
 "cvtexp":   (lambda i: [CVT(32, i), EXP(40, i), ADD(33), ADD(34)], 32, mf, 256, 6),
 "expaddrd": (lambda i: [EXP(40, i), ADD(33), ADD(34), RD128(i)], 32, mf, 256, 6),
 "rdexpadd": (lambda i: [RD128(i), EXP(40, i), ADD(33), ADD(34)], 32, mf, 256, 6),
 "addrd4":   (lambda i: [ADD(33), RDTR(i), ADD(34), RDTR(i+1), ADD(35)], 32, mf, 256, 6),
 "soft32":   (soft32, 32, mf, 256, 6),
 "soft32p":  (lambda i: soft32(i, PERM), 32, mf, 256, 6),
 "soft16":   (soft16, 64, mf16, 256, 6),
 "soft16p":  (lambda i: soft16(i, PERM), 64, mf16, 256, 6),
 "w2bare32": (lambda i: [], 32, mf, 512, 3),
 "w2bare16": (lambda i: [], 64, mf16, 512, 3),
 "w2soft32": (soft32x2, 32, mf, 512, 3),
 "w2soft16": (lambda i: soft16(i, CVT, 2), 64, mf16, 512, 3),
 "w1add":    (lambda i: [ADD(32+j) for j in range(8)], 32, nomf, 256, 6),
 "w2add":    (lambda i: [ADD(32+j) for j in range(8)], 32, nomf, 512, 3),
 "w1exp":    (lambda i: [EXP(32+j) for j in range(4)], 32, nomf, 256, 6),
 "w2exp":    (lambda i: [EXP(32+j) for j in range(4)], 32, nomf, 512, 3),
 "w1cvt":    (lambda i: [CVT(32+j) for j in range(8)], 32, nomf, 256, 6),
 "w2cvt":    (lambda i: [CVT(32+j) for j in range(8)], 32, nomf, 512, 3),
}
if __name__ == "__main__":
    asm = '.amdgcn_target "amdgcn-amd-amdhsa--gfx950"\n.text\n'
    for k, (f, n, m, th, it) in C.items():
        asm += kernel(k + "_kernel", body(f, n, m), it, th)
    asm += '.section .rodata,"a"\n.p2align 6\n'
    for k, (f, n, m, th, it) in C.items(): asm += desc(k + "_kernel", 512 if th == 256 else 256)
    hdr = "".join(f"; @launch kernel={k}_kernel grid=(256,1,1) block=({v[3]},1,1) lds=65536\n" for k, v in C.items())
    asm = hdr + asm
    if len(sys.argv) > 1 and sys.argv[1] == "gen":
        assemble(asm, "x", 2, "mb2"); print("ok"); sys.exit(0)
    co = assemble(asm, "x", 2, "mb2")
    m_ = Module(co)
    out = DeviceBuffer(1 << 24)
    rng = np.random.default_rng(0)
    data = (rng.standard_normal(1 << 23).astype(np.float32).view(np.uint32) >> 16).astype(np.uint16)
    inp = DeviceBuffer.from_numpy(data)
    big = DeviceBuffer(1 << 28)
    t = Timer()
    for k, (f, n, m, th, it) in C.items():
        fn = m_.fn(k + "_kernel")
        nw = th // 64
        walls = []
        for rep in range(5):
            memset(out); memset(big); sync()
            t.start(); launch(fn, (256,1,1), (th,1,1), [out.ptr, inp.ptr], 65536); walls.append(t.stop())
        o = out.to_numpy(np.uint32, (256*nw, NSEG, 2)).astype(np.float64)
        tot = o[:, -1, :]
        eq = NSEG * it * 32 * (nw // 4)
        cyc = tot[:,0].mean() / eq
        clk = tot[:,0].sum() / tot[:,1].sum() * 0.1
        mo = o.mean(axis=0)
        d = np.diff(np.vstack([[0,0], mo]), axis=0)
        seg = " ".join(f"{x:.2f}" for x in (d[:,0] / d[:,1] * 0.1)[::2])
        print(f"{k:10s} {cyc:6.2f} cyc/eq clk={clk:4.2f} ns/eq={cyc/clk:5.2f} wall={np.median(walls):6.1f} | {seg}", flush=True)
```

```python
import sys
sys.path.insert(0, "dev")
from hiprt import *
import mb2
from mb2 import kernel, desc, body, NSEG, EXP, ADD, CVT, PERM, RD128, RDTR, DMA

def M32(a, x, y, acc="a"):
    return f"v_mfma_f32_32x32x16_bf16 {acc}[{a}:{a+15}], v[{x}:{x+3}], v[{y}:{y+3}], {acc}[{a}:{a+15}]"
def M16(a, x, y, acc="a"):
    return f"v_mfma_f32_16x16x32_bf16 {acc}[{a}:{a+3}], v[{x}:{x+3}], v[{y}:{y+3}], {acc}[{a}:{a+3}]"
X = lambda j: 64 + (j % 8) * 4
Y = lambda j: 96 + (j % 8) * 4
none = lambda i: []
SAL = lambda r: f"s_add_u32 s{r}, s{r}, 1"
W = "s_waitcnt lgkmcnt(15)"

def s16a(i):
    j = i // 2
    if i % 2 == 0:
        r = []
        if j % 4 == 0: r.append(RD128(j // 4))
        elif j % 4 != 3: r.append(RDTR(j))
        r.append(ADD(40 + j % 2, j))
        if j % 4 == 3: r.append(CVT(44 + j % 4, j))
        return r
    r = [EXP(32 + j % 4, j)]
    if j % 4 == 1: r.append(CVT(44 + j % 4, j))
    return r
def s32a(i):
    r = []
    if i % 4 == 0: r.append(RD128(i // 4))
    elif i % 4 != 3: r.append(RDTR(i))
    r += [EXP(32 + i % 4, i), ADD(40 + i % 2, i)]
    if i % 2: r.append(CVT(44 + i % 4, i))
    return r
m16std = lambda i: M16((i % 16) * 4, X(i // 4), Y(i % 4 + 4 * ((i // 16) % 2)))
m32std = lambda i: M32((i % 4) * 16, X(i // 2), Y(i % 2 + 2 * ((i // 4) % 4)))
def M4(a, x): return f"v_mfma_f32_4x4x4_16b_bf16 a[{a}:{a+3}], v[{x}:{x+1}], v[{x}:{x+1}], a[{a}:{a+3}]"
nomf = lambda i: "; none"
main = lambda i: M16((i % 16) * 4, X(i // 2), Y(i % 4))
def mix(i, kind):
    if i % 8 < 7: return main(i)
    if kind == "dense": return M16(64 + (i // 8 % 4) * 4, X(i), X(i))
    return M4(64 + (i // 8 % 4) * 4, X(i)) + "\n    " + M4(80 + (i // 8 % 4) * 4, X(i) + 2)
C = {
 "m4only": (none, 64, lambda i: M4((i % 4) * 4, X(i)), 256, 6),
 "m4add1": (lambda i: [ADD(32)], 64, lambda i: M4((i % 4) * 4, X(i)), 256, 6),
 "mixdense": (none, 64, lambda i: mix(i, "dense"), 256, 6),
 "mix4": (none, 64, lambda i: mix(i, "m4"), 256, 6),
 "mixdense_f": (lambda i: [RDTR(i)] if i % 2 else [ADD(32)], 64, lambda i: mix(i, "dense"), 256, 6),
 "mix4_f": (lambda i: [RDTR(i)] if i % 2 else [ADD(32)], 64, lambda i: mix(i, "m4"), 256, 6),
}
if __name__ == "__main__":
    asm = '.amdgcn_target "amdgcn-amd-amdhsa--gfx950"\n.text\n'
    for k, (f, n, m, th, it) in C.items():
        asm += kernel(k + "_kernel", body(f, n, m), it, th)
    asm += '.section .rodata,"a"\n.p2align 6\n'
    for k, (f, n, m, th, it) in C.items(): asm += desc(k + "_kernel", 512 if th == 256 else 256)
    hdr = "".join(f"; @launch kernel={k}_kernel grid=(256,1,1) block=({v[3]},1,1) lds=65536\n" for k, v in C.items())
    asm = hdr + asm
    if len(sys.argv) > 1 and sys.argv[1] == "gen":
        assemble(asm, "x", 2, "mb8"); print("ok"); sys.exit(0)
    co = assemble(asm, "x", 2, "mb8")
    m_ = Module(co)
    out = DeviceBuffer(1 << 24)
    rng = np.random.default_rng(0)
    data = (rng.standard_normal(1 << 23).astype(np.float32).view(np.uint32) >> 16).astype(np.uint16)
    inp = DeviceBuffer.from_numpy(data)
    big = DeviceBuffer(1 << 28)
    res = {k: [] for k in C}
    for rnd in range(6):
        for k, (f, n, m, th, it) in C.items():
            fn = m_.fn(k + "_kernel"); nw = th // 64
            memset(out); memset(big); sync()
            launch(fn, (256,1,1), (th,1,1), [out.ptr, inp.ptr], 65536); sync()
            o = out.to_numpy(np.uint32, (256*nw, NSEG, 2)).astype(np.float64)
            tot = o[:, -1, :]
            eq = NSEG * it * 32 * (nw // 4)
            res[k].append((tot[:,0].max() / eq, tot[:,0].sum() / tot[:,1].sum() * 0.1, tot[:,1].max() * 10 / eq))
    for k in C:
        a = np.array(res[k][1:])
        print(f"{k:12s} cyc/eq={np.median(a[:,0]):6.2f} clk={np.median(a[:,1]):4.2f} ns/eq={np.median(a[:,2]):5.2f} (min {a[:,2].min():5.2f} max {a[:,2].max():5.2f})", flush=True)
```
